```python
import torch

def _softmax(x, axis=-1):
    return torch.softmax(x, dim=axis)

def _gelu(x):
    return torch.nn.functional.gelu(x, approximate='tanh')

def _silu(x):
    return torch.nn.functional.silu(x)

def _sigmoid(x):
    return torch.sigmoid(x)

def _layernorm(x, axis=-1, eps=1e-05):
    m = x.mean(dim=axis, keepdim=True)
    v = x.var(dim=axis, keepdim=True, unbiased=False)
    return (x - m) / torch.sqrt(v + eps)

def _scatter_add(tgt, idx, src, axis=0):
    return tgt.clone().index_add_(axis, idx, src)

def _segment_sum(src, seg, n):
    out = torch.zeros((n,) + src.shape[1:], dtype=src.dtype)
    return out.index_add_(0, seg, src)

def _pad(x, pw):
    flat = tuple((v for pair in reversed(pw) for v in pair))
    return torch.nn.functional.pad(x, flat)
kernel_name = 'recurrent_scan__memory_aug_recurrent_mem_tr__geglu_ffn__prompt'

def setup_inputs():

    _w = lambda a: (lambda t: t.to(torch.bfloat16) if t.is_floating_point() else t)(torch.as_tensor(a))

    def _A_setup():
        B, S, Dm = (1, 2048, 512)
        H, Dh = (32, 128)
        M, seg = (8, 32)
        seg = min(seg, S)
        S = S // seg * seg
        return {'x': _w((lambda *s: torch.randn(*s, dtype=torch.bfloat16) * 0.05)(B, S, Dm)), 'mem0': _w((lambda *s: torch.randn(*s, dtype=torch.bfloat16) * 0.2)(B, M, Dm)), 'Wq': _w((lambda *s: torch.randn(*s, dtype=torch.bfloat16) * 1.6)(Dm, H, Dh) * Dm ** (-0.5)), 'Wk': _w((lambda *s: torch.randn(*s, dtype=torch.bfloat16) * 1.6)(Dm, H, Dh) * Dm ** (-0.5)), 'Wv': _w((lambda *s: torch.randn(*s, dtype=torch.bfloat16) * 0.2)(Dm, H, Dh) * Dm ** (-0.5)), 'Wo': _w((lambda *s: torch.randn(*s, dtype=torch.bfloat16) * 0.2)(H, Dh, Dm) * (H * Dh) ** (-0.5)), 'seg_len': seg}
    _A_in = _A_setup()

    def _B_setup():
        B, S, D, F = (1, 2048, 512, 1376)
        return {'x': _w((lambda *s: torch.randn(*s, dtype=torch.bfloat16) * 0.05)(B, S, D)), 'w_gate': _w((lambda *s: torch.randn(*s, dtype=torch.bfloat16) * 0.1)(D, F)), 'w_up': _w((lambda *s: torch.randn(*s, dtype=torch.bfloat16) * 0.1)(D, F)), 'w_down': _w((lambda *s: torch.randn(*s, dtype=torch.bfloat16) * 0.1)(F, D))}
    _B_in = _B_setup()
    return {'A_x': _A_in['x'], 'A_mem0': _A_in['mem0'], 'A_Wq': _A_in['Wq'], 'A_Wk': _A_in['Wk'], 'A_Wv': _A_in['Wv'], 'A_Wo': _A_in['Wo'], 'A_seg_len': _A_in['seg_len'], 'B_x': _B_in['x'], 'B_w_gate': _B_in['w_gate'], 'B_w_up': _B_in['w_up'], 'B_w_down': _B_in['w_down']}

def reference(A_x, A_mem0, A_Wq, A_Wk, A_Wv, A_Wo, A_seg_len, B_x, B_w_gate, B_w_up, B_w_down):

    def _A_ref(x, mem0, Wq, Wk, Wv, Wo, seg_len):
        B, S, Dm = x.shape
        H, Dh = (Wq.shape[1], Wq.shape[2])
        M = mem0.shape[1]
        scale = Dh ** (-0.5)
        n_seg = S // seg_len
        L = M + seg_len
        idx = torch.arange(L)
        mask = (idx[:, None] < M) | (idx[:, None] >= idx[None, :])
        mem = mem0
        outs = []
        for s in range(n_seg):
            xs = x[:, s * seg_len:(s + 1) * seg_len, :].clone()
            h = torch.concatenate([mem, xs], axis=1)
            q = torch.einsum('btd,dhe->bhte', h, Wq)
            k = torch.einsum('btd,dhe->bhte', h, Wk)
            v = torch.einsum('btd,dhe->bhte', h, Wv)
            scores = torch.einsum('bhqe,bhke->bhqk', q, k) * scale
            scores = torch.where(mask[None, None], scores, -1000000000.0)
            p = _softmax(scores, axis=-1)
            o = torch.einsum('bhqk,bhke->bhqe', p, v)
            o = torch.einsum('bhte,hed->btd', o, Wo)
            mem = o[:, :M, :].clone()
            outs.append(o[:, M:, :])
        return torch.concatenate(outs, axis=1)

    def _B_ref(x, w_gate, w_up, w_down):
        return _gelu(x @ w_gate) * (x @ w_up) @ w_down
    x = A_x
    xn = _layernorm(x, axis=-1)
    s = _A_ref(xn, A_mem0, A_Wq, A_Wk, A_Wv, A_Wo, A_seg_len)
    g = _silu(_B_ref(xn, B_w_gate, B_w_up, B_w_down))
    return x + s * g
```

```python
from emit import *

NAME = "recurrent_scan__memory_aug_recurrent_mem_tr__geglu_ffn__prompt_kernel"

WS_P = 0x0E00000
WS_M = 0x0080000
WS_F1 = 0x0088000
WS_F2 = 0x0088400
WS_FKV = 0x0090000
WS_FO = 0x0092000
WS_FH = 0x0094000
WS_FEND = 0x0096000
WS_MG = 0x0100000
WS_XN = 0x0200000
WS_H = 0x0400000
WS_STAMP = 0x0C00000
WS_KV = 0x1000000
WS_O = 0x3000000
WS_SIZE = 0x4000000

DBG_TEAM = 4
DBG_LN = 132
DBG_ERR = 8
N_LN = 128

PTR = 64
P_X, P_MEM0, P_WQ, P_WK, P_WV, P_WO, P_SEG, P_BX, P_WG, P_WU, P_WD, P_OUT, P_DBG, P_WS = [PTR + 2 * i for i in range(14)]
SRD_WS, SRD_W, SRD_DBG, SRD_A = 4, 8, 12, 16
S_LIST, S_RANK, S_WAVE, S_FOREIGN, S_BUDGET = 20, 21, 22, 23, 24
WS = "s[4:7]"
SW = "s[8:11]"
DBG = "s[12:15]"
SA = "s[16:19]"
BUDGET = 1 << 16


def srd(k, d, ptr, nbytes):
    k(f"s_mov_b32 s{d}, s{ptr}\ns_mov_b32 s{d+1}, s{ptr+1}\ns_mov_b32 s{d+2}, {nbytes:#x}\ns_mov_b32 s{d+3}, 0x20000")


def lane_addr(k, dst, tmp, tid, add=(), xor=(), const=0, xconst=0):
    first = True
    for group, op in ((xor, "v_xor_b32"), (add, "v_add_u32")):
        for lo, width, mult in group:
            t = dst if first else tmp
            k(f"v_bfe_u32 v{t}, v{tid}, {lo}, {width}")
            if mult != 1:
                k(f"v_mul_u32_u24 v{t}, {mult}, v{t}")
            if not first:
                k(f"{op} v{dst}, v{dst}, v{tmp}")
            first = False
        if op == "v_xor_b32" and xconst:
            k(f"v_xor_b32 v{dst}, {xconst}, v{dst}")
    if first:
        k(f"v_mov_b32 v{dst}, {const}")
    elif const:
        k(f"v_add_u32 v{dst}, {const}, v{dst}")


def spend(k, code):
    k(f"s_movk_i32 s3, {code}\ns_sub_u32 s{S_BUDGET}, s{S_BUDGET}, 1\ns_cbranch_scc1 L_timeout")


def poll_word(k, srdname, voff, soff, vtmp, cmp_imm, code, mask=None, imm=0, sleep=0):
    lab = k.newlabel("poll")
    k.wait(vm=0)
    k.label(lab)
    k(f"buffer_load_dword v{vtmp}, v{voff}, {srdname}, {soff} offen offset:{imm} sc1")
    spend(k, code)
    k.wait(vm=0)
    if mask is not None:
        k(f"v_and_b32 v{vtmp+1}, {mask:#x}, v{vtmp}\nv_cmp_gt_u32 vcc, {cmp_imm}, v{vtmp+1}")
    else:
        k(f"v_cmp_gt_u32 vcc, {cmp_imm}, v{vtmp}")
    if sleep:
        done = k.newlabel("seen")
        k(f"s_cbranch_vccz {done}\ns_sleep {sleep}\ns_branch {lab}")
        k.label(done)
    else:
        k(f"s_cbranch_vccnz {lab}")


def raise_flag(k, soff, vzero, vtmp):
    lab = k.newlabel("flag")
    k.wait(vm=0, lgkm=0)
    k("s_barrier")
    k(f"s_cmp_lg_u32 s{S_WAVE}, 0\ns_cbranch_scc1 {lab}")
    k(f"v_mov_b32 v{vtmp}, 1\ns_mov_b64 exec, 1")
    k(f"buffer_store_dword v{vtmp}, v{vzero}, {WS}, {soff} offen sc1\ns_mov_b64 exec, -1")
    k.label(lab)


def xreduce(k, op, a, b):
    for sw in ("v_permlane16_swap_b32", "v_permlane32_swap_b32"):
        k(f"v_mov_b32 v{b}, v{a}\n{sw} v{a}, v{b}\n{op} v{a}, v{a}, v{b}")
```

```python
import re

REG = re.compile(r"(?<![\w.])([vas])(?:(\d+)|\[(\d+):(\d+)\])(?![\w])")
TRANS = ("v_exp_f32", "v_log_f32", "v_rcp_f32", "v_rsq_f32", "v_sqrt_f32", "v_sin_f32", "v_cos_f32")


def regs_of(tok):
    out = []
    for m in REG.finditer(tok):
        k = m.group(1)
        if m.group(2) is not None:
            out.append((k, int(m.group(2))))
        else:
            out += [(k, i) for i in range(int(m.group(3)), int(m.group(4)) + 1)]
    t = tok.strip()
    if t in ("vcc", "exec", "m0"):
        out.append((t, 0))
    return out


def split_ops(s):
    ops, depth, cur = [], 0, ""
    for ch in s:
        if ch in "[(":
            depth += 1
        if ch in "])":
            depth -= 1
        if ch == "," and depth == 0:
            ops.append(cur.strip())
            cur = ""
        else:
            cur += ch
    if cur.strip():
        ops.append(cur.strip())
    return ops


class Ins:
    def __init__(self, line):
        self.line = line
        body = line.split(";")[0].strip()
        parts = body.split(None, 1)
        self.op = op = parts[0]
        ops = split_ops(parts[1]) if len(parts) > 1 else []
        self.mods = ""
        if ops:
            last = ops[-1].split(None, 1)
            ops[-1] = last[0]
            self.mods = last[1] if len(last) > 1 else ""
        self.ops = ops
        R = [regs_of(o) for o in ops]
        flat = lambda l: [r for x in l for r in x]
        self.kind = "salu"
        self.rd, self.wr = [], []
        self.srcc = []
        self.srcab = []
        self.store_data = []
        if op.startswith("v_mfma") or op.startswith("v_smfmac"):
            self.kind = "mfma"
            self.passes = 8 if "32x32" in op else 4
            self.wr = R[0]
            if op.startswith("v_smfmac"):
                self.srcc = R[0]
                self.srcab = R[1] + R[2] + R[3]
            else:
                self.srcc = R[3]
                self.srcab = R[1] + R[2]
            self.rd = self.srcc + self.srcab
        elif op.startswith("v_"):
            self.kind = "valu"
            if op.startswith("v_cmpx"):
                self.wr = R[0] + [("exec", 0)]
                self.rd = flat(R[1:])
            elif op.startswith("v_permlane") and "swap" in op:
                self.wr = R[0] + R[1]
                self.rd = R[0] + R[1]
            elif op.startswith("v_add_co") or op.startswith("v_addc_co"):
                self.wr = R[0] + R[1]
                self.rd = flat(R[2:])
            else:
                self.wr = R[0]
                self.rd = flat(R[1:])
                if op.startswith("v_fmac") or "dpp" in op or op.startswith("v_writelane"):
                    self.rd = self.rd + R[0]
        elif op.startswith("ds_"):
            self.kind = "ds"
            if op.startswith("ds_read") or op.startswith("ds_bpermute") or op.startswith("ds_swizzle"):
                self.wr = R[0]
                self.rd = flat(R[1:])
            else:
                self.rd = flat(R)
        elif op.startswith("buffer_") or op.startswith("global_"):
            self.kind = "vmem"
            lds = "lds" in self.mods.split() or "_lds_" in op
            self.lds_dma = lds
            if op in ("buffer_wbl2", "buffer_inv"):
                pass
            elif lds:
                self.rd = flat(R) + [("m0", 0)]
            elif "load" in op:
                self.wr = R[0]
                self.rd = flat(R[1:])
            elif "atomic" in op:
                self.rd = flat(R)
                if "sc0" in self.mods.split():
                    self.wr = R[0]
            else:
                self.rd = flat(R)
                self.store_data = R[0] if op.startswith("buffer_") else R[1]
        elif op.startswith("s_load") or op in ("s_memtime", "s_memrealtime"):
            self.kind = "smem"
            self.wr = R[0]
            self.rd = flat(R[1:])
        elif op.startswith("s_cmp") or op.startswith("s_cbranch") or op in (
                "s_branch", "s_barrier", "s_nop", "s_waitcnt", "s_sleep", "s_endpgm", "s_setprio", "s_bitcmp1_b32",
                "s_bitcmp0_b32"):
            self.rd = flat(R)
        else:
            self.wr = R[0] if R else []
            self.rd = flat(R[1:])
            if "saveexec" in op:
                self.wr = self.wr + [("exec", 0)]
            if op in ("s_addk_i32", "s_mulk_i32", "s_bitset0_b32", "s_bitset1_b32"):
                self.rd = self.rd + R[0]


class Emit:
    def __init__(self):
        self.lines = []
        self.hist = []
        self.t = 0
        self.lgkm = []
        self.vm = []
        self.smem = False
        self.smem_regs = set()
        self.auto_nops = 0
        self.uid = 0
        self.on_mfma = None

    def raw(self, s):
        self.lines.append(s)

    def comment(self, s):
        self.lines.append("    ; " + s)

    def newlabel(self, base):
        self.uid += 1
        return f"L_{base}_{self.uid}"

    def label(self, name, vm=None, lgkm=None):
        self.lines.append(name + ":")
        if vm is not None:
            self.vm = [[] for _ in range(vm)]
        if lgkm is not None:
            self.lgkm = [[] for _ in range(lgkm)]

    def state(self):
        return ([list(x) for x in self.vm], [list(x) for x in self.lgkm], list(self.hist), self.t)

    def set_state(self, st):
        self.vm, self.lgkm, self.hist = [list(x) for x in st[0]], [list(x) for x in st[1]], list(st[2])
        self.t = st[3]

    def fresh(self):
        self.vm, self.lgkm, self.hist = [], [], []
        self.smem = False
        self.smem_regs = set()

    def _put(self, ins, states=1):
        self.lines.append("    " + ins.line)
        self.hist.append((ins, self.t))
        self.t += states
        if len(self.hist) > 40:
            self.hist.pop(0)

    def _need(self, c):
        need = 0
        rd, wr = set(c.rd), set(c.wr)
        for p, tp in self.hist:
            req = 0
            pw = set(p.wr)
            if p.kind == "valu":
                vw = {r for r in pw if r[0] in "va" and len(r[0]) == 1}
                sw = {r for r in pw if r[0] in ("s", "vcc")}
                if c.kind == "mfma" and vw & rd:
                    req = max(req, 2)
                if c.kind == "mfma" and ("exec", 0) in pw:
                    req = max(req, 4)
                if c.kind == "valu":
                    if ("dpp" in c.op or c.op.startswith("v_permlane")) and vw & rd:
                        req = max(req, 2)
                    if c.op.startswith("v_read") and vw & rd:
                        req = max(req, 1)
                    if p.op.startswith(TRANS) and vw & rd:
                        req = max(req, 1)
                    if sw & rd:
                        req = max(req, 4 if c.op.startswith(("v_readlane", "v_writelane")) else 2)
                    if ("exec", 0) in pw:
                        if "dpp" in c.op:
                            req = max(req, 5)
                        elif c.op.startswith(("v_read", "v_writelane", "v_permlane")):
                            req = max(req, 4)
                    if ("sdwa" in p.op or "op_sel" in p.mods) and not p.op.startswith("v_pk") and vw & (rd | wr):
                        req = max(req, 1)
                if c.kind == "vmem" and sw & rd:
                    req = max(req, 5)
                if c.kind in ("salu", "smem") and sw & rd:
                    req = max(req, 1)
            elif p.kind == "mfma":
                big = {4: 8, 8: 12}[p.passes]
                if c.kind == "mfma":
                    if pw & set(c.srcab):
                        req = max(req, big)
                    if pw & set(c.srcc) or pw & wr:
                        same = (c.srcc == p.wr or not (pw & set(c.srcc))) and (c.wr == p.wr or not (pw & wr))
                        if not (same and c.op == p.op):
                            req = max(req, big - 2)
                elif c.kind in ("valu", "ds", "vmem"):
                    if pw & (rd | wr):
                        req = max(req, big)
                    if c.kind == "valu" and set(p.srcc) & wr:
                        req = max(req, {4: 3, 8: 7}[p.passes])
            elif p.kind == "salu":
                if ("m0", 0) in pw and c.kind == "vmem" and ("m0", 0) in rd:
                    req = max(req, 1)
            elif p.kind == "vmem":
                if len(p.store_data) >= 3 and set(p.store_data) & wr:
                    req = max(req, 2)
            if req:
                need = max(need, req - (self.t - tp - 1))
        return need

    def wait(self, vm=None, lgkm=None):
        parts = []
        if vm is not None:
            parts.append(f"vmcnt({vm})")
            self.vm = self.vm[len(self.vm) - vm:] if vm < len(self.vm) and vm > 0 else ([] if vm == 0 else self.vm)
        if lgkm is not None:
            parts.append(f"lgkmcnt({lgkm})")
            if lgkm == 0:
                self.lgkm = []
                self.smem = False
                self.smem_regs = set()
            elif lgkm < len(self.lgkm):
                self.lgkm = self.lgkm[len(self.lgkm) - lgkm:]
        self._put(Ins("s_waitcnt " + " ".join(parts)))

    def nop(self, n):
        while n > 0:
            k = min(n, 16)
            self._put(Ins(f"s_nop {k - 1}"), k)
            n -= k

    def __call__(self, text, nowait=False):
        for line in text.split("\n"):
            line = line.strip()
            if not line:
                continue
            if line.startswith(";"):
                self.lines.append("    " + line)
                continue
            if line.endswith(":"):
                self.label(line[:-1])
                continue
            c = Ins(line)
            if c.op == "s_waitcnt":
                m = re.search(r"vmcnt\((\d+)\)", line)
                n = re.search(r"lgkmcnt\((\d+)\)", line)
                self.wait(int(m.group(1)) if m else None, int(n.group(1)) if n else None)
                continue
            if c.op == "s_nop":
                self.nop(int(c.ops[0]) + 1)
                continue
            touched = set(c.rd) | set(c.wr)
            wv = wl = None
            if not nowait:
                for i, regs in enumerate(self.vm):
                    if touched & set(regs):
                        wv = min(len(self.vm) - 1 - i, 63)
                for i, regs in enumerate(self.lgkm):
                    if touched & set(regs):
                        wl = min(len(self.lgkm) - 1 - i, 15)
                if touched & self.smem_regs:
                    wl = 0
            if wv is not None or wl is not None:
                self.wait(wv, wl)
            need = self._need(c)
            if need > 0:
                self.auto_nops += need
                self.nop(need)
            self._put(c)
            if c.kind == "mfma" and self.on_mfma:
                self.on_mfma()
            if c.kind == "ds":
                self.lgkm.append(list(c.wr))
            elif c.kind == "vmem":
                self.vm.append(list(c.wr))
            elif c.kind == "smem":
                self.smem = True
                self.smem_regs |= set(c.wr)

    def text(self):
        return "\n".join(self.lines) + "\n"


def vr(a, n=1):
    return f"v{a}" if n == 1 else f"v[{a}:{a + n - 1}]"


def ar(a, n=1):
    return f"a{a}" if n == 1 else f"a[{a}:{a + n - 1}]"


def sr(a, n=1):
    return f"s{a}" if n == 1 else f"s[{a}:{a + n - 1}]"


def ur(u, n=1):
    return vr(u, n) if u < 256 else ar(u - 256, n)
```

```python
from common import *


def run_units(k, units, slots, s_w4096, s_tmp, vtmp, aW=None, mod="nt"):
    ns = len(slots)
    nd = [len(u["dma"]) for u in units]

    def issue(n):
        u = units[n]
        if u.get("pre"):
            u["pre"]()
        for d, (voff, sb, const) in enumerate(u["dma"]):
            k(f"s_add_u32 m0, s{s_w4096}, {slots[n % ns] + d * 1024}")
            k(f"s_add_u32 s{s_tmp}, s{sb}, {const:#x}")
            k(f"buffer_load_dwordx4 v{voff}, {SW}, s{s_tmp} offen {mod} lds")

    k.wait(vm=0, lgkm=0)
    k("s_barrier")
    for n in range(min(ns, len(units))):
        issue(n)
    for n, u in enumerate(units):
        k.wait(vm=sum(nd[n + 1:n + ns]))
        k("s_barrier")
        late = []
        t = vtmp
        for (va, imm, dest) in u["reads"]:
            if isinstance(dest, tuple):
                k(f"ds_read_b64_tr_b16 {vr(t, 2)}, v{va} offset:{slots[n % ns] + imm}")
                late.append((t, dest[1]))
                t += 2
            else:
                k(f"ds_read_b64_tr_b16 {ur(dest, 2)}, v{va} offset:{slots[n % ns] + imm}")
        k.wait(lgkm=0)
        if n + ns < len(units):
            k("s_barrier")
            issue(n + ns)
        for (t, off) in late:
            k(f"ds_write_b64 v{aW}, {vr(t, 2)} offset:{off}")
    k.wait(lgkm=0)
    k("s_barrier")


def qkv_setup(k, tid, vsrc, vrd, vtmp, rotate, stride=8192):
    for odd in range(2):
        lane_addr(k, vsrc + odd, vtmp, tid, xor=[(0, 4, 16), (4, 2, 32)], xconst=128 * odd, add=[(4, 1, 16 * stride), (5, 1, stride)])
    xor = [(0, 1, 8), (1, 1, 16), (2, 2, 256), (2, 2, 32), (4, 1, 128), (4, 2, 1024), (6, 2, 64)]
    if rotate:
        xor.append((6, 2, 4096))
    lane_addr(k, vrd, vtmp, tid, xor=xor)
    for x in range(4):
        for u in range(2):
            if x or u:
                k(f"v_xor_b32 v{vrd + 2 * x + u}, {x * 4096 + u * 32}, v{vrd}")


def qkv_units(k, ptr, s_base, vsrc, vrd, dest, stride=8192):
    units = []
    for t0 in range(2):
        for y in range(4):
            dma = [(vsrc + (gb & 1), s_base + t0, (32 * (y >> 1) + 2 * (y & 1) + 4 * gb) * stride)
                   for gb in range(4)]
            reads = []
            for x in range(4):
                for u in range(2):
                    d = dest(u, 2 * x + t0)
                    d = ("lds", d[1] + (y >> 1) * 1024 + (y & 1) * 8) if isinstance(d, tuple) else d + 2 * y
                    reads.append((vrd + 2 * x + u, 0, d))
            units.append(dict(dma=dma, reads=reads))
    units[0]["pre"] = lambda: srd(k, SRD_W, ptr, 512 * stride)
    return units
```

```python
from loader import *

L_MEM, L_KX, L_XB, L_SEL, L_W = 0, 8192, 24576, 28928, 32768
XROW = 544

MF = 0
RING = 32
ACCV = 56
QF = 64
ACCQ, ACCK = 80, 88
ACCO = 80
VX = 96
ONES = 104
SM = 108
PM, ZERO, VM0, IDX, VM1, AL16 = 112, 113, 114, 115, 116, 117
AMOWN, AM1, AW, APST, AMST, AXW, AXQ, FLAG = 118, 119, 122, 123, 124, 125, 126, 127

S_STEP, S_M0, S_M1, S_MST, S_MRS = 25, 26, 27, 28, 29
S_PST, S_PLD, S_PRS = 30, 38, 46
S_VX, S_KX, S_MG, S_FLAG, S_PUB, S_F0, S_F1, S_C, S_T, S_HF, S_KM0 = 48, 49, 50, 51, 52, 54, 55, 56, 57, 58, 60
S_AUX, S_VM0, S_PR = 61, 62, 63

QLDS = {(0, 0): (0, 32), (1, 0): (1, 40), (0, 1): (2, 48), (1, 1): (3, 64), (0, 2): (4, 72), (1, 7): (5, 32)}
OLDS = {0: (6, 32), 1: (7, 40), 2: (8, 48), 3: (9, 0), 4: (10, 8), 5: (11, 16), 6: (12, 24), 7: (13, 56),
        14: (14, 32), 15: (15, 40)}
_res = iter(range(128, 512, 8))
QREG = {(u, t): next(_res) for u in range(2) for t in range(8) if (u, t) not in QLDS}
OREG = {n: next(_res) for n in range(16) if n not in OLDS}
KREG = {(u, t): next(_res) for u in range(2) for t in range(8)}
VREG = {(u, t): next(_res) for u in range(2) for t in range(8)}


def smf(acc, a, b):
    return f"v_smfmac_f32_16x16x64_bf16 {vr(acc, 4)}, {vr(a, 4)}, {ur(b, 8)}, v{IDX} abid:1"


def Q(u, t):
    return smf(ACCQ + 4 * u, MF + 4 * t, QLDS[(u, t)][1] if (u, t) in QLDS else QREG[(u, t)])


def Kk(u, t):
    return smf(ACCK + 4 * u, MF + 4 * t, KREG[(u, t)])


def V(u, t):
    return smf(ACCV + 4 * u, MF + 4 * t, VREG[(u, t)])


def O(n):
    return smf(ACCO + 4 * (n >> 2), QF + 4 * (n & 3), OLDS[n][1] if n in OLDS else OREG[n])


def wread(slot, reg, half):
    return f"ds_read_b128 {vr(reg + 4 * half, 4)}, v{AW} offset:{slot * 2048 + half * 1024}"


def dense(acc, a, b, first):
    return f"v_mfma_f32_16x16x32_bf16 {vr(acc, 4)}, {vr(a, 4)}, {vr(b, 4)}, {'0' if first else vr(acc, 4)}"


def prep_next(k, part=None):
    if part != 1:
        for (u, t), (slot, reg) in QLDS.items():
            if (u, t) != (1, 7):
                k(wread(slot, reg, 0))
                k(wread(slot, reg, 1))
    if part != 0:
        for r in list(range(ACCQ, ACCQ + 16, 2)) + list(range(ACCV, ACCV + 8, 2)):
            k(f"v_mov_b64 {vr(r, 2)}, 0")


def team_prologue(k, opt):
    tid = 0
    VS, VR_, VT = 2, 4, 16
    k(f"s_lshr_b32 s3, s{S_RANK}, 2")
    k(f"s_lshl_b32 s{S_T}, s{S_WAVE}, 1\ns_xor_b32 s{S_F0}, s{S_T}, s3\ns_xor_b32 s{S_F1}, s{S_F0}, 1")
    k(f"s_lshl_b32 s{S_T}, s{S_RANK}, 8")
    k(f"s_lshl_b32 s30, s{S_F0}, 19\ns_add_u32 s30, s30, s{S_T}\ns_lshl_b32 s31, s{S_F1}, 19\ns_add_u32 s31, s31, s{S_T}")
    k(f"s_lshl_b32 s32, s{S_RANK}, 17\ns_lshl_b32 s{S_T}, s{S_WAVE}, 8\ns_add_u32 s32, s32, s{S_T}")
    k(f"s_lshl_b32 s33, s{S_WAVE}, 12")
    k(f"s_lshl_b32 s{S_F0}, s{S_F0}, 10\ns_lshl_b32 s{S_F1}, s{S_F1}, 10")
    lane_addr(k, AL16, VT, tid, add=[(0, 6, 16)])
    lane_addr(k, AW, VT, tid, add=[(0, 6, 16), (6, 2, 32768)], const=L_W)
    lane_addr(k, AMST, VT, tid, add=[(0, 2, 4), (2, 1, 32), (3, 1, 64), (4, 1, 16), (5, 1, 256)])
    k(f"s_lshr_b32 s3, s{S_RANK}, 1\ns_lshl_b32 s3, s3, 9\ns_and_b32 s{S_T}, s{S_RANK}, 1\ns_lshl_b32 s{S_T}, s{S_T}, 7")
    k(f"s_add_u32 s3, s3, s{S_T}\nv_add_u32 v{AMST}, s3, v{AMST}")

    k(f"s_lshl_b32 s{S_PRS}, s{S_RANK}, 13\ns_lshl_b32 s{S_T}, s{S_WAVE}, 11\ns_add_u32 s{S_PRS}, s{S_PRS}, s{S_T}")
    k(f"s_add_u32 s{S_PRS}, s{S_PRS}, {WS_P:#x}")
    for r in range(4):
        k(f"v_mov_b32 v{SM + r}, -1")
    for p in range(4):
        k(f"s_add_u32 s{S_T}, s{S_PRS}, {p * 0x40000:#x}")
        for i in range(2):
            k(f"buffer_store_dwordx4 {vr(SM, 4)}, v{AL16}, {WS}, s{S_T} offen offset:{i * 1024} sc1")
    k(f"s_lshl_b32 s{S_T}, s{S_WAVE}, 13\ns_add_u32 s{S_T}, s{S_T}, {WS_M:#x}")
    k(f"buffer_store_dword v{SM}, v{AMST}, {WS}, s{S_T} offen sc1")

    qkv_setup(k, tid, VS, VR_, VT, rotate=True)
    VSO, VRO = 12, 40
    lane_addr(k, VSO, VT, tid, xor=[(0, 4, 16), (4, 2, 64)], add=[(4, 1, 16 * 1024), (5, 1, 2 * 1024)])
    lane_addr(k, VRO, VT, tid, xor=[(0, 1, 8), (1, 1, 16), (3, 1, 32), (2, 1, 256 + 64), (4, 1, 512 + 128), (5, 1, 1024),
                                    (6, 2, 4096)])
    k(f"s_lshr_b32 s3, s{S_RANK}, 3\ns_lshl_b32 s3, s3, 6\nv_xor_b32 v{VRO}, s3, v{VRO}")
    for x in range(1, 4):
        k(f"v_xor_b32 v{VRO + x}, {64 * x}, v{VRO}")

    def arrive():
        lab = k.newlabel("arr")
        k(f"s_cmp_lg_u32 s{S_WAVE}, 0\ns_cbranch_scc1 {lab}")
        k(f"s_lshl_b32 s3, s{S_FOREIGN}, 16\ns_add_u32 s3, s3, 1\nv_mov_b32 v13, s3\nv_mov_b32 v14, 0\ns_mov_b64 exec, 1")
        k(f"buffer_atomic_add v13, v14, {DBG}, 0 offen offset:{DBG_TEAM} sc1\ns_mov_b64 exec, -1")
        k.label(lab)

    units = []
    units += qkv_units(k, P_WQ, 30, VS, VR_, lambda u, t: ("lds", QLDS[(u, t)][0] * 2048) if (u, t) in QLDS else QREG[(u, t)])
    ou = []
    for ks in range(4):
        for Y in range(2):
            dma = [(VSO, 32, (32 * ks + 8 * Y + (d >> 1) + 4 * (d & 1)) * 1024) for d in range(4)]
            reads = []
            for y0 in range(2):
                for x in range(4):
                    n = 4 * x + ks
                    d = ("lds", OLDS[n][0] * 2048 + Y * 1024 + y0 * 8) if n in OLDS else OREG[n] + 4 * Y + 2 * y0
                    reads.append((VRO + x, y0 * 2048, d))
            ou.append(dict(dma=dma, reads=reads))
    ou[0]["pre"] = lambda: srd(k, SRD_W, P_WO, 4096 * 512 * 2)
    units += ou
    units += qkv_units(k, P_WK, 30, VS, VR_, lambda u, t: KREG[(u, t)])
    units += qkv_units(k, P_WV, 30, VS, VR_, lambda u, t: VREG[(u, t)])
    first_pre = units[0]["pre"]
    units[0]["pre"] = lambda: (arrive(), first_pre())
    run_units(k, units, [0, 16384], 33, S_T, VT, aW=AW, mod=opt.get("wmod", "nt"))

    if opt.get("total"):
        k("s_memrealtime s[94:95]")
    lane_addr(k, AMOWN, VT, tid, add=[(0, 6, 16), (6, 2, 2048)], const=L_MEM)
    for x in range(1, 4):
        k(f"v_xor_b32 v{AM1 + x - 1}, {2048 * x}, v{AMOWN}")
    lane_addr(k, APST, VT, tid, add=[(0, 5, 8), (5, 1, 8192)])
    lane_addr(k, AXW, VT, tid, add=[(0, 4, 4), (4, 2, 2 * XROW), (6, 2, 64)], const=L_XB)
    lane_addr(k, AXQ, VT, tid, add=[(0, 1, XROW), (2, 2, 2 * XROW), (4, 2, 16)], const=L_XB)
    k(f"s_mov_b32 s{S_HF}, 0xcccccccc\ns_mov_b32 s{S_HF+1}, 0xcccccccc")
    k(f"v_mov_b32 v{IDX}, 0x44440000\nv_mov_b32 v{VT}, 0xeeee0010\nv_cndmask_b32 v{IDX}, v{IDX}, v{VT}, s[{S_HF}:{S_HF+1}]")
    k(f"v_mov_b32 v{ZERO}, 0")
    for r in range(4):
        k(f"v_mov_b32 v{ONES + r}, 0x3f803f80")
    lane_addr(k, 20, VT, tid, add=[(3, 1, 1), (0, 1, 2), (1, 1, 4)])
    lane_addr(k, 21, VT, tid, add=[(2, 1, 16)])
    k(f"v_mov_b32 v22, 0x3f80\nv_lshlrev_b32 v21, v21, v22")
    for a in range(4):
        k(f"v_cmp_eq_u32 vcc, {a}, v20\nv_cndmask_b32 v{24 + a}, 0, v21, vcc")
    k(f"ds_write_b128 v{AL16}, v[24:27] offset:{L_SEL}")
    k(f"s_mov_b32 s{S_C}, {opt['c_bits']:#x}")
    k(f"s_lshr_b32 s3, s{S_RANK}, 3")
    for x in range(4):
        k(f"s_xor_b32 s{S_T}, s3, {x}\ns_lshl_b32 s{S_T}, s{S_T}, 14\ns_lshl_b32 s{S_PST + x}, s{S_WAVE}, 16")
        k(f"s_add_u32 s{S_PST + x}, s{S_PST + x}, s{S_T}\ns_lshl_b32 s{S_T}, s{S_RANK}, 8")
        k(f"s_add_u32 s{S_PST + x}, s{S_PST + x}, s{S_T}")
    k(f"s_lshr_b32 s3, s{S_RANK}, 1\ns_and_b32 s3, s3, 3")
    for x in range(4):
        k(f"s_xor_b32 s{S_T}, s3, {x}\ns_lshl_b32 s{S_T}, s{S_T}, 11\ns_lshl_b32 s{S_PLD + x}, s{S_RANK}, 13")
        k(f"s_add_u32 s{S_PLD + x}, s{S_PLD + x}, s{S_T}")
    k(f"s_lshl_b32 s{S_KX}, s{S_RANK}, 14\ns_lshl_b32 s{S_KM0}, s{S_WAVE}, 11\ns_add_u32 s{S_KX}, s{S_KX}, s{S_KM0}")
    k(f"s_add_u32 s{S_KX}, s{S_KX}, {WS_KV:#x}\ns_add_u32 s{S_VX}, s{S_KX}, 8192\ns_add_u32 s{S_KM0}, s{S_KM0}, {L_KX}")
    k(f"s_lshl_b32 s{S_FLAG}, s{S_RANK}, 8\ns_add_u32 s{S_FLAG}, s{S_FLAG}, {WS_FKV:#x}")
    k(f"s_and_b32 s3, s{S_RANK}, 3\ns_lshl_b32 s3, s3, 4\ns_mov_b64 s[{S_PUB}:{S_PUB+1}], 0xffff")
    k(f"s_lshl_b64 s[{S_PUB}:{S_PUB+1}], s[{S_PUB}:{S_PUB+1}], s3")
    k(f"s_add_u32 s{S_MG}, s{S_F0}, {WS_MG:#x}\ns_mov_b32 s{S_M0}, s{S_MG}\ns_add_u32 s{S_M1}, s{S_F1}, {WS_MG:#x}")
    k(f"s_mov_b32 s{S_STEP}, 0")

    poll_word(k, DBG, ZERO, 0, 20, N_LN, 1, imm=DBG_LN)
    poll_word(k, DBG, ZERO, 0, 20, 32, 2, mask=0xffff, imm=DBG_TEAM)
    k(f"v_readfirstlane_b32 s{S_FOREIGN}, v20")
    k(f"s_lshr_b32 s{S_FOREIGN}, s{S_FOREIGN}, 16")
    k(f"v_lshrrev_b32 v22, 2, v{AL16}\nv_min_u32 v22, 4, v22")
    poll_word(k, WS, 22, f"s{S_FLAG}", 20, 1, 3)
    k(f"s_add_u32 s{S_T}, s{S_FLAG}, 8\ns_cmp_eq_u32 s{S_WAVE}, 2\ns_cselect_b32 s{S_AUX}, s{S_T}, {WS_SIZE:#x}")
    k(f"s_cselect_b32 s{S_MG}, s{S_MG}, {WS_SIZE:#x}")
    srd(k, SRD_A, P_WS, 0x40000)
    k(f"s_lshl_b32 s{S_VM0}, s{S_WAVE}, 11")
    k(f"s_mov_b32 m0, s{S_KM0}")
    for i in range(2):
        k(f"buffer_load_dwordx4 v{AL16}, {WS}, s{S_KX} offen offset:{i * 1024} sc1 lds")
        k(f"buffer_load_dwordx4 {vr(VX + 4 * i, 4)}, v{AL16}, {WS}, s{S_VX} offen offset:{i * 1024} sc1")
    k(f"s_add_u32 s{S_KX}, s{S_KX}, 0x80000\ns_add_u32 s{S_VX}, s{S_VX}, 0x80000")
    prep_next(k)
    if opt.get("total"):
        k("s_memrealtime s[96:97]\ns_memtime s[92:93]")
    k.wait(vm=0, lgkm=0)


def team_step(k, p, st, tag, opt):
    stamp = opt.get("stamp")
    kvstep = opt.get("kvstep", 0x80000)
    comm = not opt.get("nocomm")

    def T(i):
        if stamp and i in stamp:
            j = stamp.index(i)
            k(f"s_memtime s[{92 + 2 * j}:{93 + 2 * j}]")

    cnt = [0]

    def after_mfma():
        T(100 + cnt[0])
        cnt[0] += 1
    k.on_mfma = after_mfma if stamp else None

    def mread(t):
        return f"ds_read_b128 {vr(MF + 4 * t, 4)}, v{AM1 + (t >> 1) - 1} offset:{(t & 1) * 1024}"

    def kxread(ks, tau):
        return f"ds_read_b128 {vr(KXR[(ks, tau)], 4)}, v{AL16} offset:{L_KX + p * 8192 + tau * 4096 + ks * 1024}"

    def add2(acc, i):
        return f"v_add_f32 v{acc + i}, v{acc + i}, v{acc + 2 + i}"

    def pack(acc, i):
        return f"v_cvt_pk_bf16_f32 v{acc + i}, v{acc + i}, v{acc + 4 + i}"

    def oread(n):
        return wread(OLDS[n][0], OLDS[n][1], 0) + "\n" + wread(OLDS[n][0], OLDS[n][1], 1)

    def shot2():
        k(f"buffer_load_dwordx4 {vr(MF, 4)}, v{AL16}, {WS}, s{S_M0} offen sc1", nowait=True)
        k(f"buffer_load_dwordx4 {vr(MF + 4, 4)}, v{AL16}, {WS}, s{S_M1} offen sc1", nowait=True)

    KXR = {(0, 0): 40, (0, 1): 44, (1, 0): 48, (1, 1): 52, (2, 0): 32, (2, 1): 36, (3, 0): 40, (3, 1): 44}
    KMR = [48, 52, 32, 36]
    top = f"L_t{tag}{p}_poll"
    again = f"L_t{tag}{p}_again"
    miss = f"L_t{tag}{p}_miss"
    extra = 2 if opt.get("gap2") else 0
    k.label(top, vm=0, lgkm=0)
    k.nop(opt.get("d2", 0))
    T(7)
    shot2()
    if extra:
        k.nop(opt["gap2"])
        shot2()
    k.label(again, vm=0)
    k.wait(vm=1 + extra, lgkm=0)
    T(0)
    k(f"v_max3_u32 v{PM}, v0, v1, v2\nv_max_u32 v{PM}, v{PM}, v3")
    k(Q(0, 0))
    k(f"ds_write_b128 v{AMOWN}, {vr(MF, 4)}")
    k(Q(1, 0))
    k.wait(vm=extra)
    k(f"v_max3_u32 v{PM}, v{PM}, v4, v5")
    k(Kk(0, 0))
    k(f"v_max3_u32 v{PM}, v{PM}, v6, v7")
    k(Kk(1, 0))
    k(f"ds_write_b128 v{AMOWN}, {vr(MF + 4, 4)} offset:1024")
    k(f"v_cmp_eq_u32 vcc, -1, v{PM}")
    k(Q(0, 1))
    k(f"s_add_u32 m0, s{S_KM0}, {(1 - p) * 8192}")
    k(Q(1, 1))
    if comm:
        k(f"s_cbranch_vccnz {miss}")
    k(Kk(0, 1))
    k.wait(lgkm=0)
    T(10)
    k("s_barrier")
    T(11)
    k(mread(2))
    k(Kk(1, 1))
    k(mread(3) + "\n" + mread(4))
    k(V(0, 0))
    k(mread(5) + "\n" + mread(6))
    k(V(1, 0))
    k(mread(7))
    k(f"buffer_load_dwordx4 v{AL16}, {WS}, s{S_KX} offen sc1 lds")
    k(V(0, 1))
    k(wread(5, 32, 0) + "\n" + wread(5, 32, 1))
    k(Q(0, 2))
    k(f"s_add_u32 s{S_T}, s{S_STEP}, 2\ns_and_b32 s{S_T}, s{S_T}, 3")
    k(Q(0, 3))
    k(f"s_lshl_b32 s{S_T}, s{S_T}, 13\ns_add_u32 s{S_MRS}, s{S_T}, {WS_M:#x}")
    k(Q(0, 4))
    k(f"buffer_load_dwordx4 v{AL16}, {WS}, s{S_KX} offen offset:1024 sc1 lds")
    k(f"s_add_u32 s{S_T}, s{S_STEP}, 3")
    k(Q(0, 5))
    k(f"s_and_b32 s{S_T}, s{S_T}, 3\ns_lshl_b32 s{S_T}, s{S_T}, 18")
    k(Q(0, 6))
    k(f"s_add_u32 s{S_PR}, s{S_PRS}, s{S_T}\ns_add_u32 s{S_KX}, s{S_KX}, {kvstep:#x}")
    k(Q(0, 7))
    k(f"buffer_load_dword v{FLAG}, v{ZERO}, {WS}, s{S_AUX} offen sc1")
    k(f"s_mov_b32 m0, s{S_VM0}")
    T(12)
    k(Q(1, 2))
    k(kxread(0, 0) + "\n" + kxread(0, 1))
    k(Q(1, 3))
    k(kxread(1, 0) + "\n" + kxread(1, 1))
    k(Q(1, 4))
    k(f"buffer_store_dwordx4 {vr(SM, 4)}, v{AL16}, {WS}, s{S_PR} offen {st}")
    k(Q(1, 5))
    k(f"s_add_u32 s{S_T}, s{S_STEP}, 1\ns_and_b32 s{S_T}, s{S_T}, 3")
    k(add2(ACCQ, 0))
    k(Q(1, 6))
    k(f"s_lshl_b32 s{S_T}, s{S_T}, 13\ns_add_u32 s{S_MST}, s{S_T}, {WS_M:#x}")
    k(add2(ACCQ, 1))
    k(Q(1, 7))
    k(kxread(2, 0) + "\n" + kxread(2, 1))
    k(Kk(0, 2))
    k(f"buffer_store_dwordx4 {vr(SM, 4)}, v{AL16}, {WS}, s{S_PR} offen offset:1024 {st}")
    k.nop(1)
    k(Kk(0, 3))
    k(f"s_add_u32 s{S_M0}, s{S_MST}, s{S_F0}\ns_add_u32 s{S_M1}, s{S_MST}, s{S_F1}")
    k(add2(ACCQ + 4, 0))
    k(Kk(0, 4))
    k(f"s_and_b32 s{S_T}, s{S_STEP}, 3\ns_lshl_b32 s{S_T}, s{S_T}, 18")
    k(add2(ACCQ + 4, 1))
    k(Kk(0, 5))
    k(f"s_add_u32 s{S_T}, s{S_T}, {WS_P:#x}")
    k(pack(ACCQ, 0))
    k(Kk(0, 6))
    k(f"s_add_u32 s{SRD_A}, s{P_WS}, s{S_T}\ns_addc_u32 s{SRD_A + 1}, s{P_WS + 1}, 0")
    k(pack(ACCQ, 1))
    k(Kk(0, 7))
    k(f"ds_write2_b32 v{AXW}, v{ACCQ}, v{ACCQ + 1} offset0:0 offset1:{XROW // 4}")
    k(Kk(1, 2))
    k(f"buffer_store_dword v{SM}, v{AMST}, {WS}, s{S_MRS} offen {st}")
    k(Kk(1, 3))
    k(f"s_mov_b64 exec, s[{S_PUB}:{S_PUB+1}]")
    k(f"buffer_store_dwordx4 {vr(MF, 4)}, v{AL16}, {WS}, s{S_MG} offen sc1")
    k("s_mov_b64 exec, -1")
    k(Kk(1, 4))
    k.wait(lgkm=0)
    k("s_barrier")
    k(add2(ACCK, 0))
    k(Kk(1, 5))
    k(f"ds_read_b128 {vr(QF, 4)}, v{AXQ}\nds_read_b128 {vr(QF + 4, 4)}, v{AXQ} offset:64")
    k(add2(ACCK, 1))
    k(Kk(1, 6))
    k(f"ds_read_b128 {vr(QF + 8, 4)}, v{AXQ} offset:128\nds_read_b128 {vr(QF + 12, 4)}, v{AXQ} offset:192")
    k(Kk(1, 7))
    T(1)
    k(f"buffer_load_dwordx4 v{AL16}, {WS}, s{S_VX} offen sc1 lds")
    k(f"s_add_u32 s{S_MG}, s{S_MG}, 8192")
    k.nop(1)
    k(V(1, 1))
    k.nop(2)
    SX = ACCQ

    def sx(ks, tau):
        return dense(SX + 4 * tau, KXR[(ks, tau)], QF + 4 * ks, ks == 0)

    k(sx(0, 0))
    k(add2(ACCK + 4, 0) + "\n" + add2(ACCK + 4, 1))
    k(sx(0, 1))
    k(pack(ACCK, 0) + "\n" + pack(ACCK, 1))
    k(sx(1, 0))
    k(f"ds_write2_b32 v{AXW}, v{ACCK}, v{ACCK + 1} offset0:64 offset1:{64 + XROW // 4}")
    k(kxread(3, 0))
    k(sx(1, 1))
    k(kxread(3, 1))
    k(sx(2, 0))
    k(f"buffer_load_dwordx4 v{AL16}, {WS}, s{S_VX} offen offset:1024 sc1 lds")
    k(sx(2, 1))
    k(V(0, 2))
    k.wait(lgkm=2)
    k("s_barrier")
    k(f"ds_read_b128 {vr(KMR[0], 4)}, v{AXQ} offset:256")
    k(sx(3, 0))
    k(f"ds_read_b128 {vr(KMR[1], 4)}, v{AXQ} offset:320\nds_read_b128 {vr(KMR[2], 4)}, v{AXQ} offset:384")
    k(sx(3, 1))
    k(f"ds_read_b128 {vr(KMR[3], 4)}, v{AXQ} offset:448")
    k.nop(2)
    k(V(0, 3))
    k(f"s_add_u32 s{S_VX}, s{S_VX}, {kvstep:#x}")
    k.nop(2)
    k(V(0, 4))
    hf = f"s[{S_HF}:{S_HF+1}]"
    sel = lambda r: f"v_cndmask_b32 v{SX + r}, v{SX + r}, v{SX + 4 + r}, {hf}"
    MX, M2 = SX + 4, SX + 5
    k(dense(SM, KMR[0], QF, True))
    k.wait(lgkm=2)
    k(sel(0) + "\n" + sel(1))
    k(dense(SM, KMR[1], QF + 4, False))
    k.wait(lgkm=0)
    k(sel(2) + "\n" + sel(3))
    k(dense(SM, KMR[2], QF + 8, False))
    k(f"v_max3_f32 v{MX}, v{SX}, v{SX + 1}, v{SX + 2}")
    k(dense(SM, KMR[3], QF + 12, False))
    T(2)
    k(oread(1))
    k(V(0, 5))
    k(oread(2))
    k(V(0, 6))
    k(oread(0))
    k(f"v_cndmask_b32 v{SM}, v{SM}, v{SM + 1}, {hf}")
    k(f"v_max3_f32 v{MX}, v{MX}, v{SX + 3}, v{SM}")
    k(V(0, 7))
    k(f"v_max_f32_dpp v{MX}, v{MX}, v{MX} quad_perm:[2,3,0,1] row_mask:0xf bank_mask:0xf")
    k(f"v_mov_b32 v{M2}, v{MX}")
    k(V(1, 2))
    k(f"v_permlane16_swap_b32 v{MX}, v{M2}")
    k(f"v_max_f32 v{MX}, v{MX}, v{M2}\nv_mov_b32 v{M2}, v{MX}")
    k(V(1, 3))
    k(f"v_permlane32_swap_b32 v{MX}, v{M2}")
    k(f"v_max_f32 v{MX}, v{MX}, v{M2}\nv_mul_f32 v{MX}, s{S_C}, v{MX}")
    fma = lambda r: f"v_fma_f32 v{r}, v{r}, s{S_C}, -v{MX}"
    ex = lambda r: f"v_exp_f32 v{r}, v{r}"
    k(fma(SM) + "\n" + fma(SX))
    k(V(1, 4))
    k(fma(SX + 1))
    k(V(1, 5))
    k(fma(SX + 2))
    k(V(1, 6))
    if extra:
        k.wait(vm=9)
    k(fma(SX + 3))
    k(V(1, 7))
    k(oread(3))
    k(ex(SM) + "\n" + ex(SX) + "\n" + ex(SX + 1) + "\n" + ex(SX + 2) + "\n" + ex(SX + 3))
    PX, AL, A0, A1 = QF, QF + 4, QF + 8, QF + 12
    k(f"v_cvt_pk_bf16_f32 v{PM}, v{SM}, 0")
    k(f"v_cvt_pk_bf16_f32 v{PX}, v{SX}, v{SX + 1}")
    k(f"v_lshlrev_b32 v{PM}, v{IDX}, v{PM}")
    k(f"v_cvt_pk_bf16_f32 v{PX + 1}, v{SX + 2}, v{SX + 3}")
    k(add2(ACCV, 0))
    T(3)
    d16 = lambda acc, b: f"v_mfma_f32_16x16x16_bf16 {vr(acc, 4)}, {vr(PM, 2)}, {vr(b, 2)}, 0"
    s32 = lambda acc, b: f"v_smfmac_f32_16x16x32_bf16 {vr(acc, 4)}, {vr(PX, 2)}, {vr(b, 4)}, v{IDX} abid:2"
    k(d16(AL, ONES))
    k(add2(ACCV, 1))
    k(f"v_cvt_pk_bf16_f32 v{VM0}, v{ACCV}, v{ACCV + 1}")
    k(s32(AL, ONES))
    k(oread(4))
    k(add2(ACCV + 4, 0))
    k(d16(A0, VM0))
    k(add2(ACCV + 4, 1))
    k(f"v_cvt_pk_bf16_f32 v{VM1}, v{ACCV + 4}, v{ACCV + 5}")
    k(s32(A0, VX))
    k(oread(5))
    k(add2(AL, 0))
    k(d16(A1, VM1))
    k(add2(AL, 1))
    k(s32(A1, VX + 4))
    k(oread(6))
    T(13)
    k(f"v_rcp_f32 v{AL}, v{AL}\nv_rcp_f32 v{AL + 1}, v{AL + 1}")
    k(f"v_pk_add_f32 {vr(A0, 2)}, {vr(A0, 2)}, {vr(A0 + 2, 2)}")
    k(f"v_pk_mul_f32 {vr(A0, 2)}, {vr(A0, 2)}, {vr(AL, 2)}")
    k(f"v_pk_add_f32 {vr(A1, 2)}, {vr(A1, 2)}, {vr(A1 + 2, 2)}")
    k(f"v_pk_mul_f32 {vr(A1, 2)}, {vr(A1, 2)}, {vr(AL, 2)}")
    k(pack(A0, 0) + "\n" + pack(A0, 1))
    k(f"ds_write2_b32 v{AXW}, v{A0}, v{A0 + 1} offset0:0 offset1:{XROW // 4}")
    for r in range(ACCO, ACCO + 16, 2):
        k(f"v_mov_b64 {vr(r, 2)}, 0")
    k.wait(lgkm=0)
    k("s_barrier")
    for ks in range(4):
        k(f"ds_read_b128 {vr(QF + 4 * ks, 4)}, v{AXQ} offset:{64 * ks}")
    k(oread(7))
    k(f"ds_read_b128 {vr(VX, 4)}, v{AL16} offset:{L_SEL}")
    T(4)

    def cv(x, i):
        a = ACCO + 4 * x
        return f"v_cvt_pk_bf16_f32 v{a + i}, v{a + 2 * i}, v{a + 2 * i + 1}"

    def pst(x):
        return f"buffer_store_dwordx2 {vr(ACCO + 4 * x, 2)}, v{APST}, {SA}, s{S_PST + x} offen {st}"

    for n in range(16):
        k(O(n))
        x, ks = n >> 2, n & 3
        if n == 3:
            k(oread(14))
            k.nop(1)
        elif n == 4:
            k(oread(15))
            k.nop(1)
        elif x and ks == 0:
            k.nop(3)
        elif ks == 3 and n < 15:
            k(pst(x - 1))
            k.nop(2)
        if n == 12:
            k.wait(lgkm=0)
        if x and ks in (1, 2):
            k(cv(x - 1, ks - 1))
    k(pst(2))
    k(f"s_add_u32 s{S_STEP}, s{S_STEP}, 1\ns_cmp_lt_u32 s{S_STEP}, 61\ns_cselect_b32 s{S_T}, 4, 0")
    k(f"s_mov_b32 s{S_FLAG}, s{S_AUX}\ns_add_u32 s{S_AUX}, s{S_AUX}, s{S_T}\ns_cmp_lg_u32 s{S_WAVE}, 0")
    k(cv(3, 0) + "\n" + cv(3, 1))
    k(pst(3))
    T(5)

    other = k.newlabel("notred")
    join = k.newlabel("join")
    k(f"s_cbranch_scc1 {other}")
    saved = k.state()
    RA = SM
    retry = k.newlabel("red")
    good = k.newlabel("good")

    def pld(x):
        for i in range(2):
            k(f"buffer_load_dwordx4 {vr(MF + 8 * x + 4 * i, 4)}, v{AL16}, {SA}, s{S_PLD + x} offen offset:{i * 1024} sc1",
              nowait=True)

    def publish():
        k(f"v_cvt_pk_bf16_f32 v{RA + 2}, v{RA}, v{RA + 1}")
        k(f"v_cmpx_o_f32 vcc, v{RA}, v{RA + 1}")
        k(f"buffer_store_dword v{RA + 2}, v{AMST}, {WS}, s{S_MST} offen {st}")
        k("s_mov_b64 exec, -1")

    def pld1(i):
        k(f"buffer_load_dwordx4 {vr(MF + 4 * i, 4)}, v{AL16}, {SA}, s{S_PLD + (i >> 1)} offen offset:{(i & 1) * 1024} sc1",
          nowait=True)

    k.nop(opt.get("d1", 0))
    T(14)
    for x in range(3):
        pld(x)
    k.nop(opt.get("d1b", 0))
    pld(3)
    prep_next(k)
    k(f"s_mov_b32 s{S_T}, 64")
    roll = k.newlabel("roll")
    k.label(roll, vm=0)
    for i in range(8):
        k.wait(vm=7)
        k(dense(RA, VX, MF + 4 * i, i == 0))
        pld1(i)
        if i == 0:
            T(15)
    k(f"s_sub_u32 s{S_BUDGET}, s{S_BUDGET}, {1 if opt.get('total') else 0}")
    k(f"s_sub_u32 s{S_T}, s{S_T}, 1")
    k(f"s_cbranch_scc1 {retry}")
    publish()
    k("s_cmp_eq_u64 vcc, -1")
    if comm:
        k(f"s_cbranch_scc0 {roll}")
    k.label(good)
    k(f"s_cmp_eq_u32 s{S_STEP}, 63\ns_cbranch_scc1 L_team_last")
    k(f"s_branch {join}")
    k.label(retry, vm=0)
    for x in range(4):
        pld(x)
    spend(k, 17)
    k.wait(vm=0)
    k(f"v_max3_u32 v{PM}, v0, v1, v2")
    for r in range(3, 31, 2):
        k(f"v_max3_u32 v{PM}, v{PM}, v{r}, v{r + 1}")
    k(f"v_max_u32 v{PM}, v{PM}, v31\nv_cmp_eq_u32 vcc, -1, v{PM}")
    k(f"s_cbranch_vccnz {retry}")
    for i in range(8):
        k(dense(RA, VX, MF + 4 * i, i == 0))
    k(f"v_cvt_pk_bf16_f32 v{RA + 2}, v{RA}, v{RA + 1}")
    k(f"buffer_store_dword v{RA + 2}, v{AMST}, {WS}, s{S_MST} offen {st}")
    k(f"s_branch {good}")

    k.fresh()
    k.label(miss)
    shot2()
    spend(k, 16)
    k.nop(3)
    for r in range(ACCQ, ACCQ + 16, 2):
        k(f"v_mov_b64 {vr(r, 2)}, 0")
    k(f"s_branch {again}")

    k.set_state(saved)
    k.label(other)
    prep_next(k)
    k(f"s_cmp_eq_u32 s{S_STEP}, 63\ns_cbranch_scc1 L_exit")
    k.wait(vm=4)
    k(f"s_cmp_lg_u32 s{S_WAVE}, 2\ns_cbranch_scc1 {join}")
    k(f"v_cmp_eq_u32 vcc, 0, v{FLAG}\ns_cbranch_vccz {join}")
    poll_word(k, WS, ZERO, f"s{S_FLAG}", FLAG, 1, 18)
    k.label(join)
    k("s_barrier")
    k(f"ds_read_b128 {vr(VX, 4)}, v{AMOWN}\nds_read_b128 {vr(VX + 4, 4)}, v{AMOWN} offset:1024")
    k(f"v_mov_b64 {vr(SM, 2)}, -1\nv_mov_b64 {vr(SM + 2, 2)}, -1")
    T(6)
    if stamp:
        stamp_out(k, stamp)


def stamp_out(k, stamp):
    k.wait(lgkm=0)
    k(f"s_lshl_b32 s3, s{S_RANK}, 2\ns_add_u32 s3, s3, s{S_WAVE}\ns_lshl_b32 s3, s3, 6\ns_add_u32 s3, s3, s{S_STEP}")
    k(f"s_lshl_b32 s3, s3, 5\ns_add_u32 s3, s3, {WS_STAMP:#x}")
    for j, i in enumerate(stamp):
        k(f"v_mov_b32 v{PM}, s{92 + 2 * j}")
        k(f"buffer_store_dword v{PM}, v{ZERO}, {WS}, s3 offen offset:{4 * j}")


def team(k, opt):
    k.fresh()
    k.label("L_team")
    team_prologue(k, opt)
    k(f"s_cmp_lg_u32 s{S_FOREIGN}, 0\ns_cbranch_scc1 L_tslow0_poll")
    if opt.get("force_slow"):
        k("s_branch L_tslow0_poll")
    for tag, st in (("fast", ""), ("slow", "sc1")):
        k.raw(".p2align 6")
        k.hist = []
        for p in range(2):
            team_step(k, p, st, tag, opt)
        k(f"s_branch L_t{tag}0_poll")
    k.fresh()
    k.label("L_team_last")
    k(f"s_mov_b32 s{S_T}, {WS_MG + 63 * 8192:#x}")
    k(f"buffer_store_dword v{SM + 2}, v{AMST}, {WS}, s{S_T} offen sc1")
    k("s_branch L_exit")
```

```python
import math, struct
from loader import *


def f2u(x):
    return struct.unpack("<I", struct.pack("<f", x))[0]


def mf(acc, a, b, first):
    return f"v_mfma_f32_16x16x32_bf16 {vr(acc, 4)}, {ur(a, 4)}, {ur(b, 4)}, {'0' if first else vr(acc, 4)}"


def pack(d, a, b):
    return f"v_cvt_pk_bf16_f32 v{d}, v{a}, v{b}"


def ln_phase(k, opt):
    if opt.get("no_ln"):
        return
    IDXS, T = 25, 26
    A, L16, TMP, X, F = 1, 2, 3, 16, 48
    k(f"s_sub_u32 s{IDXS}, s{S_LIST}, 4\ns_lshl_b32 s{IDXS}, s{IDXS}, 5\ns_add_u32 s{IDXS}, s{IDXS}, s{S_RANK}")
    srd(k, SRD_A, P_X, 2048 * 1024)
    srd(k, SRD_W, P_MEM0, 8192)
    lane_addr(k, A, TMP, 0, add=[(0, 4, 1024), (4, 1, 8), (5, 1, 32), (6, 2, 256)])
    lane_addr(k, L16, TMP, 0, add=[(0, 6, 16)])
    k(f"s_lshl_b32 s{T}, s{IDXS}, 14")
    for kk in range(4):
        for hf in range(2):
            k(f"buffer_load_dwordx2 {vr(X + 4 * kk + 2 * hf, 2)}, v{A}, {SA}, s{T} offen offset:{kk * 64 + hf * 16}")
    lane_addr(k, 4, TMP, 0, add=[(0, 1, 1024), (1, 1, 16), (2, 2, 2048), (4, 2, 32), (6, 2, 128)])
    for r in range(4):
        k(f"v_mov_b32 v{8 + r}, -1\nv_mov_b32 v{12 + r}, 0")
    lab = k.newlabel("nomem0")
    k(f"s_cmp_ge_u32 s{IDXS}, 2\ns_cbranch_scc1 {lab}")
    k(f"s_lshl_b32 s{T}, s{IDXS}, 9\nbuffer_load_dwordx4 v[8:11], v4, {SW}, s{T} offen")
    k.label(lab)
    k.wait(vm=0)
    k(f"s_lshl_b32 s{T}, s{IDXS}, 2\ns_add_u32 s{T}, s{T}, s{S_WAVE}\ns_lshl_b32 s{T}, s{T}, 10\ns_add_u32 s{T}, s{T}, {WS_MG:#x}")
    k(f"buffer_store_dwordx4 v[8:11], v{L16}, {WS}, s{T} offen sc1")
    k(f"s_mul_i32 s{T}, s{IDXS}, 192\ns_add_u32 s{T}, s{T}, {WS_FKV:#x}\ns_mov_b64 exec, 0xfff")
    k(f"buffer_store_dwordx4 v[12:15], v{L16}, {WS}, s{T} offen sc1\ns_mov_b64 exec, -1")
    for i in range(16):
        k(f"v_lshlrev_b32 v{F + 2 * i}, 16, v{X + i}\nv_and_b32 v{F + 2 * i + 1}, 0xffff0000, v{X + i}")
    lane_addr(k, 5, TMP, 0, add=[(0, 4, 16), (6, 2, 4)], const=64)
    lane_addr(k, 6, TMP, 0, add=[(0, 4, 16)], const=64)

    def row_total(off):
        xreduce(k, "v_add_f32", 32, 33)
        k(f"ds_write_b32 v5, v32 offset:{off}")
        k.wait(lgkm=0)
        k(f"s_barrier\nds_read_b128 v[36:39], v6 offset:{off}")
        k("v_add_f32 v36, v36, v37\nv_add_f32 v38, v38, v39\nv_add_f32 v32, v36, v38")
        k(f"v_mul_f32 v32, {f2u(1 / 512):#x}, v32")

    def round_bf16(r):
        k(f"v_cvt_pk_bf16_f32 v{r}, v{r}, v{r}\nv_and_b32 v{r}, 0xffff0000, v{r}")

    k(f"v_add_f32 v32, v{F}, v{F + 1}\nv_add_f32 v33, v{F + 2}, v{F + 3}")
    for i in range(4, 32):
        k(f"v_add_f32 v{32 + (i & 1)}, v{32 + (i & 1)}, v{F + i}")
    k("v_add_f32 v32, v32, v33")
    row_total(0)
    k("v_mov_b32 v34, v32\nv_mov_b32 v32, 0\nv_mov_b32 v33, 0")
    for i in range(32):
        k(f"v_sub_f32 v{40 + (i & 1)}, v{F + i}, v34\nv_fmac_f32 v{32 + (i & 1)}, v{40 + (i & 1)}, v{40 + (i & 1)}")
    k("v_add_f32 v32, v32, v33")
    row_total(256)
    round_bf16(34)
    round_bf16(32)
    k(f"v_add_f32 v32, {f2u(1e-5):#x}, v32")
    round_bf16(32)
    k("v_sqrt_f32 v32, v32")
    round_bf16(32)
    k("v_rcp_f32 v32, v32")
    for kk in range(4):
        for hf in range(2):
            for a0 in range(2):
                i = F + 2 * (4 * kk + 2 * hf + a0)
                k(f"v_sub_f32 v{i}, v{i}, v34\nv_sub_f32 v{i + 1}, v{i + 1}, v34\n" + pack(40, i, i + 1))
                k(f"v_lshlrev_b32 v{i}, 16, v40\nv_and_b32 v{i + 1}, 0xffff0000, v40")
                k(f"v_mul_f32 v{i}, v{i}, v32\nv_mul_f32 v{i + 1}, v{i + 1}, v32\n" + pack(X + 4 * kk + 2 * a0 + hf, i, i + 1))
    k(f"s_lshr_b32 s{T}, s{IDXS}, 1\ns_lshl_b32 s{T}, s{T}, 15\ns_and_b32 s3, s{IDXS}, 1\ns_lshl_b32 s3, s3, 10\ns_add_u32 s{T}, s{T}, s3")
    k(f"s_lshl_b32 s3, s{S_WAVE}, 13\ns_add_u32 s{T}, s{T}, s3\ns_add_u32 s{T}, s{T}, {WS_XN:#x}")
    for kk in range(4):
        if kk == 2:
            k(f"s_add_u32 s{T}, s{T}, 4096")
        k(f"buffer_store_dwordx4 {vr(X + 4 * kk, 4)}, v{L16}, {WS}, s{T} offen offset:{(kk & 1) * 2048} sc1")
    lab = k.newlabel("lndone")
    k.wait(vm=0, lgkm=0)
    k(f"s_barrier\ns_cmp_lg_u32 s{S_WAVE}, 0\ns_cbranch_scc1 {lab}")
    k(f"v_mov_b32 v4, 1\nv_mov_b32 v5, 0\ns_mov_b64 exec, 1")
    k(f"buffer_atomic_add v4, v5, {DBG}, 0 offen offset:{DBG_LN} sc1\ns_mov_b64 exec, -1")
    k.label(lab)


def xn_dma(k, s_seg, s_buf, s_t, L16):
    k(f"s_lshl_b32 s{s_t}, s{s_seg}, 15\ns_lshl_b32 s3, s{S_WAVE}, 13\ns_add_u32 s{s_t}, s{s_t}, s3")
    k(f"s_add_u32 s{s_t}, s{s_t}, {WS_XN:#x}\ns_add_u32 s3, s3, s{s_buf}")
    for half in range(2):
        k(f"s_add_u32 m0, s3, {half * 4096}")
        if half:
            k(f"s_add_u32 s{s_t}, s{s_t}, 4096")
        for i in range(4):
            k(f"buffer_load_dwordx4 v{L16}, {WS}, s{s_t} offen offset:{i * 1024} sc1 lds")


def token_gemm(k, AX, XF, per_kk):
    rd = lambda kk, tau: f"ds_read_b128 {vr(XF + 8 * (kk & 1) + 4 * tau, 4)}, v{AX} offset:{kk * 2048 + tau * 1024}"
    k(rd(0, 0) + "\n" + rd(0, 1))
    for kk in range(16):
        ms = per_kk(kk, lambda tau: XF + 8 * (kk & 1) + 4 * tau)
        for i, m in enumerate(ms):
            k(m)
            if kk < 15 and i < 2:
                k(rd(kk + 1, i))


def proj_role(k, opt):
    L_XN, L_ST, L_MEM, L_XB = 0, 65536, 65536 + 3 * 24576, 65536 + 3 * 24576 + 8192
    XROW = 288
    S_SEG, S_FIN, S_BUF, S_SP, S_SF, S_T, S_C, S_NX = 25, 26, 27, 28, 29, 34, 35, 36
    S_MASK = 40
    L16, ZERO, IDX, AMW, AMR, AXW, AXR, A0, A1 = 116, 117, 119, 120, 121, 122, 123, 124, 125
    VM0, VM1 = 118, 126
    res = iter(range(128, 512, 8))
    W = {m: {(u, t): next(res) for u in range(2) for t in range(8)} for m in "kvq"}
    wf = lambda m, u, kk: W[m][(u, kk >> 1)] + 4 * (kk & 1)

    k.fresh()
    k.label("L_proj")
    VS, VR_, VT = 2, 4, 16
    k(f"s_lshl_b32 s30, s{S_WAVE}, 20\ns_lshl_b32 s3, s{S_RANK}, 8\ns_add_u32 s30, s30, s3\ns_add_u32 s31, s30, 0x80000")
    k(f"s_lshl_b32 s33, s{S_WAVE}, 12")
    qkv_setup(k, 0, VS, VR_, VT, rotate=False)
    units = []
    for m, ptr in (("k", P_WK), ("v", P_WV), ("q", P_WQ)):
        units += qkv_units(k, ptr, 30, VS, VR_, lambda u, t, m=m: W[m][(u, t)])
    run_units(k, units, [0, 16384, 32768], 33, S_T, VT, mod=opt.get("pmod", ""))

    lane_addr(k, L16, VT, 0, add=[(0, 6, 16)])
    lane_addr(k, AMW, VT, 0, add=[(0, 6, 16), (6, 2, 2048)], const=L_MEM)
    lane_addr(k, AMR, VT, 0, add=[(0, 6, 16)], const=L_MEM)
    lane_addr(k, AXW, VT, 0, add=[(0, 4, 4), (4, 2, 2 * XROW), (6, 2, 64)], const=L_XB)
    lane_addr(k, AXR, VT, 0, add=[(0, 1, XROW), (2, 2, 2 * XROW), (4, 2, 16)], const=L_XB)
    lane_addr(k, IDX, VT, 0, add=[(1, 1, 0xaaaa)], const=0x4444)
    k(f"v_mov_b32 v{ZERO}, 0\nv_mov_b32 v127, 0\ns_mov_b32 s{S_C}, {opt['c_bits']:#x}")
    lane_addr(k, 20, VT, 0, add=[(4, 2, 4)])
    lane_addr(k, 21, VT, 0, add=[(0, 4, 1)])
    for r in range(4):
        k(f"v_add_u32 v22, {r}, v20\nv_cmp_gt_u32 s[{S_MASK + 2 * r}:{S_MASK + 2 * r + 1}], v22, v21")
    k(f"s_sub_u32 s{S_SEG}, s{S_LIST}, 1\ns_mov_b32 s{S_FIN}, s{S_SEG}\ns_mov_b32 s{S_BUF}, 0")
    k(f"s_mov_b32 s{S_SP}, {L_ST}\ns_mov_b32 s{S_SF}, {L_ST}")
    poll_word(k, DBG, ZERO, 0, 20, N_LN, 32, imm=DBG_LN, sleep=2)
    xn_dma(k, S_SEG, S_BUF, S_T, L16)

    def next_slot(s):
        k(f"s_add_u32 s{s}, s{s}, 24576\ns_cmp_eq_u32 s{s}, {L_ST + 3 * 24576}\ns_cselect_b32 s{s}, {L_ST}, s{s}")

    k.label("L_proj_loop", vm=0, lgkm=0)
    k(f"s_cmp_ge_u32 s{S_SEG}, 64\ns_cbranch_scc1 L_proj_fin")
    k.wait(vm=0)
    k("s_barrier")
    k(f"v_add_u32 v{A0}, s{S_BUF}, v{L16}")
    k(f"s_xor_b32 s{S_BUF}, s{S_BUF}, 32768\ns_add_u32 s{S_NX}, s{S_SEG}, 3\ns_min_u32 s{S_NX}, s{S_NX}, 63")
    xn_dma(k, S_NX, S_BUF, S_T, L16)
    AQ, AK, AV, XF = 0, 16, 32, 48

    def per_kk(kk, xf):
        ms = []
        for tau in range(2):
            for u in range(2):
                ms.append(mf(AK + 8 * tau + 4 * u, wf("k", u, kk), xf(tau), kk == 0))
                ms.append(mf(AV + 8 * u + 4 * tau, xf(tau), wf("v", u, kk), kk == 0))
                ms.append(mf(AQ + 8 * tau + 4 * u, wf("q", u, kk), xf(tau), kk == 0))
        return ms
    token_gemm(k, A0, XF, per_kk)
    k(f"s_lshl_b32 s3, s{S_WAVE}, 10\ns_add_u32 s3, s3, s{S_SP}\nv_add_u32 v{A0}, s3, v{L16}")
    k(f"s_lshl_b32 s3, s{S_WAVE}, 11\ns_add_u32 s3, s3, s{S_SP}\nv_add_u32 v{A1}, s3, v{L16}")
    k(f"s_lshl_b32 s{S_T}, s{S_SEG}, 5\ns_add_u32 s{S_T}, s{S_T}, s{S_RANK}\ns_lshl_b32 s{S_T}, s{S_T}, 14")
    k(f"s_add_u32 s{S_T}, s{S_T}, {WS_KV:#x}\ns_lshl_b32 s3, s{S_WAVE}, 10\ns_add_u32 s37, s{S_T}, s3\ns_add_u32 s38, s37, 4096")
    k(f"s_add_u32 s39, s37, s3\ns_add_u32 s39, s39, 8192")
    for tau in range(2):
        for r in range(4):
            k(pack(72 + 4 * tau + r, AK + 8 * tau + r, AK + 8 * tau + 4 + r))
        k(f"buffer_store_dwordx4 {vr(72 + 4 * tau, 4)}, v{L16}, {WS}, s{37 + tau} offen sc1")
        k(f"ds_write_b128 v{A0}, {vr(72 + 4 * tau, 4)} offset:{8192 + tau * 4096}")
    for u in range(2):
        for a in range(2):
            for tau in range(2):
                k(pack(80 + 4 * u + 2 * a + tau, AV + 8 * u + 4 * tau + 2 * a, AV + 8 * u + 4 * tau + 2 * a + 1))
        k(f"buffer_store_dwordx4 {vr(80 + 4 * u, 4)}, v{L16}, {WS}, s39 offen offset:{u * 1024} sc1")
        k(f"ds_write_b128 v{A1}, {vr(80 + 4 * u, 4)} offset:{16384 + u * 1024}")
    for tau in range(2):
        for r in range(4):
            k(pack(64 + 4 * tau + r, AQ + 8 * tau + r, AQ + 8 * tau + 4 + r))
        k(f"ds_write_b128 v{A0}, {vr(64 + 4 * tau, 4)} offset:{tau * 4096}")
    k(f"s_lshl_b32 s{S_T}, s{S_RANK}, 6\ns_add_u32 s{S_T}, s{S_T}, s{S_SEG}\ns_lshl_b32 s{S_T}, s{S_T}, 2\ns_add_u32 s{S_T}, s{S_T}, {WS_FKV:#x}")
    raise_flag(k, f"s{S_T}", ZERO, 20)
    next_slot(S_SP)
    k(f"s_add_u32 s{S_SEG}, s{S_SEG}, 3\ns_sub_u32 s3, s{S_SEG}, s{S_FIN}\ns_cmp_lt_u32 s3, 9\ns_cbranch_scc1 L_proj_loop")

    k.label("L_proj_fin", vm=0, lgkm=0)
    QF, KF, KM, S00, S10, S11, SM0 = 64, 0, 48, 96, 100, 104, 108
    k(f"v_add_u32 v{A0}, s{S_SF}, v{L16}")
    k(f"s_lshl_b32 s3, s{S_WAVE}, 11\nv_add_u32 v{A1}, s3, v{A0}")
    for ks in range(4):
        for tau in range(2):
            k(f"ds_read_b128 {vr(QF + 16 * tau + 4 * ks, 4)}, v{A0} offset:{tau * 4096 + ks * 1024}")
            k(f"ds_read_b128 {vr(KF + 16 * tau + 4 * ks, 4)}, v{A0} offset:{8192 + tau * 4096 + ks * 1024}")
    for ks in range(4):
        k(mf(S00, KF + 4 * ks, QF + 4 * ks, ks == 0))
        k(mf(S10, KF + 4 * ks, QF + 16 + 4 * ks, ks == 0))
        k(mf(S11, KF + 16 + 4 * ks, QF + 16 + 4 * ks, ks == 0))
    AKM, AVM = 32, 40
    for r in range(AKM, AKM + 16, 2):
        k(f"v_mov_b64 {vr(r, 2)}, 0")
    k("v_mov_b32 v48, 0xff800000")
    for r in range(4):
        for S in (S00, S11):
            k(f"v_cndmask_b32 v{S + r}, v{S + r}, v48, s[{S_MASK + 2 * r}:{S_MASK + 2 * r + 1}]")
    k(f"s_lshl_b32 s{S_T}, s{S_FIN}, 13\ns_lshl_b32 s3, s{S_WAVE}, 11\ns_add_u32 s{S_T}, s{S_T}, s3\ns_add_u32 s{S_T}, s{S_T}, {WS_MG:#x}")
    k.label("L_proj_poll")
    k(f"buffer_load_dwordx4 v[0:3], v{L16}, {WS}, s{S_T} offen sc1")
    k(f"buffer_load_dwordx4 v[4:7], v{L16}, {WS}, s{S_T} offen offset:1024 sc1")
    spend(k, 33)
    k.wait(vm=0)
    k("v_max3_u32 v8, v0, v1, v2\nv_max3_u32 v9, v3, v4, v5\nv_max3_u32 v8, v8, v6, v7\nv_max_u32 v8, v8, v9")
    k("v_cmp_eq_u32 vcc, -1, v8\ns_cbranch_vccz L_proj_got\ns_sleep 1\ns_branch L_proj_poll")
    k.label("L_proj_got")
    k(f"ds_write_b128 v{AMW}, v[0:3]\nds_write_b128 v{AMW}, v[4:7] offset:1024")
    k.wait(lgkm=0)
    k("s_barrier")
    for t in range(8):
        k(f"ds_read_b128 {vr(4 * t, 4)}, v{AMR} offset:{t * 1024}")
    smf = lambda acc, m, u, t: f"v_smfmac_f32_16x16x64_bf16 {vr(acc + 4 * u, 4)}, {vr(4 * t, 4)}, {ur(W[m][(u, t)], 8)}, v{IDX}"
    for t in range(8):
        for u in range(2):
            k(smf(AKM, "k", u, t))
    post = ["s_nop 2", "s_nop 2"]
    post += [f"v_add_f32 v{AKM + 4 * u + i}, v{AKM + 4 * u + i}, v{AKM + 4 * u + 2 + i}" for u in range(2) for i in range(2)]
    post += [pack(AKM + i, AKM + i, AKM + 4 + i) for i in range(2)]
    post += [f"ds_write2_b32 v{AXW}, v{AKM}, v{AKM + 1} offset0:0 offset1:{XROW // 4}", "", "", "", "s_waitcnt lgkmcnt(0)\ns_barrier"]
    post += [f"ds_read_b128 {vr(KM + 4 * ks, 4)}, v{AXR} offset:{64 * ks}" for ks in range(3)]
    for n in range(16):
        k(smf(AVM, "v", n & 1, n >> 1))
        k(post[n])
    k(f"ds_read_b128 {vr(KM + 12, 4)}, v{AXR} offset:192")
    VF, ONE = 0, 8
    k(f"ds_read_b128 {vr(VF, 4)}, v{A1} offset:16384\nds_read_b128 {vr(VF + 4, 4)}, v{A1} offset:17408")
    for ks in range(4):
        for th in range(2):
            k(mf(SM0 + 4 * th, KM + 4 * ks, QF + 16 * th + 4 * ks, ks == 0))
    for u in range(2):
        for i in range(2):
            k(f"v_add_f32 v{AVM + 4 * u + i}, v{AVM + 4 * u + i}, v{AVM + 4 * u + 2 + i}")
        k(pack((VM0, VM1)[u], AVM + 4 * u, AVM + 4 * u + 1))
    for r in range(4):
        k(f"v_mov_b32 v{ONE + r}, 0x3f803f80")
    vals = [[S00 + r for r in range(4)] + [SM0, SM0 + 1], [S10 + r for r in range(8)] + [SM0 + 4, SM0 + 5]]
    MX = [12, 14]
    for th in range(2):
        v = vals[th]
        k(f"v_max_f32 v{MX[th]}, v{v[0]}, v{v[1]}")
        for i in range(2, len(v), 2):
            k(f"v_max3_f32 v{MX[th]}, v{MX[th]}, v{v[i]}, v{v[i + 1]}")
    for sw in ("v_permlane16_swap_b32", "v_permlane32_swap_b32"):
        for th in range(2):
            k(f"v_mov_b32 v{MX[th] + 1}, v{MX[th]}")
        for th in range(2):
            k(f"{sw} v{MX[th]}, v{MX[th] + 1}")
        for th in range(2):
            k(f"v_max_f32 v{MX[th]}, v{MX[th]}, v{MX[th] + 1}")
    for th in range(2):
        k(f"v_mul_f32 v{MX[th]}, s{S_C}, v{MX[th]}")
    PX, PM = [16, 20], [24, 26]
    for th in range(2):
        for r in vals[th]:
            k(f"v_fma_f32 v{r}, v{r}, s{S_C}, -v{MX[th]}")
        for r in vals[th]:
            k(f"v_exp_f32 v{r}, v{r}")
        k(f"v_mov_b32 v{PM[th] + 1}, 0")
        if th == 0:
            k(f"v_mov_b32 v{PX[0] + 1}, 0\nv_mov_b32 v{PX[0] + 3}, 0")
            k(pack(PX[0], S00, S00 + 1) + "\n" + pack(PX[0] + 2, S00 + 2, S00 + 3))
        else:
            for a in range(2):
                for tau in range(2):
                    k(pack(PX[1] + 2 * a + tau, S10 + 4 * tau + 2 * a, S10 + 4 * tau + 2 * a + 1))
        k(pack(PM[th], SM0 + 4 * th, SM0 + 4 * th + 1))
        AO = 48 + 12 * th
        for j, ax in enumerate((ONE, VF, VF + 4)):
            k(mf(AO + 4 * j, ax, PX[th], True))
            k.nop(2)
        for j, am in enumerate((ONE, VM0, VM1)):
            k(f"v_mfma_f32_16x16x16_bf16 {vr(AO + 4 * j, 4)}, {vr(am, 2)}, {vr(PM[th], 2)}, {vr(AO + 4 * j, 4)}")
    k(f"s_lshl_b32 s{S_T}, s{S_FIN}, 18\ns_lshl_b32 s3, s{S_RANK}, 12\ns_add_u32 s{S_T}, s{S_T}, s3")
    k(f"s_lshl_b32 s3, s{S_WAVE}, 10\ns_add_u32 s{S_T}, s{S_T}, s3\ns_add_u32 s{S_T}, s{S_T}, {WS_O:#x}")
    for th in range(2):
        AO = 48 + 12 * th
        k(f"v_rcp_f32 v{AO}, v{AO}")
        for r in range(8):
            k(f"v_mul_f32 v{AO + 4 + r}, v{AO + 4 + r}, v{AO}")
        for r in range(4):
            k(pack(AO + 4 + r, AO + 4 + r, AO + 8 + r))
        k(f"buffer_store_dwordx4 {vr(AO + 4, 4)}, v{L16}, {WS}, s{S_T} offen sc1")
        k(f"s_add_u32 s{S_T}, s{S_T}, 0x20000")
    k(f"s_lshl_b32 s{S_T}, s{S_FIN}, 5\ns_add_u32 s{S_T}, s{S_T}, s{S_RANK}\ns_lshl_b32 s{S_T}, s{S_T}, 2\ns_add_u32 s{S_T}, s{S_T}, {WS_FO:#x}")
    raise_flag(k, f"s{S_T}", ZERO, 20)
    next_slot(S_SF)
    k(f"s_add_u32 s{S_FIN}, s{S_FIN}, 3\ns_cmp_lt_u32 s{S_FIN}, 64\ns_cbranch_scc1 L_proj_loop\ns_branch L_exit")


def ffn_role(k, opt):
    S_SEG, S_BUF, S_CU, S_T, S_NX, S_K1, S_K2 = 25, 27, 28, 34, 36, 37, 38
    L16, ZERO, A0 = 116, 117, 124
    W = {m: {(u, t): 256 + 128 * i + 64 * u + 8 * t for u in range(2) for t in range(8)} for i, m in enumerate("gu")}
    wf = lambda m, u, kk: W[m][(u, kk >> 1)] + 4 * (kk & 1)
    k.fresh()
    k.label("L_ffn")
    ln_phase(k, opt)
    if "ffn" in opt.get("ln_only", ()):
        k("s_branch L_exit")
    k(f"s_cmp_ge_u32 s{S_RANK}, 22\ns_cbranch_scc1 L_exit")
    k(f"s_cmp_ge_u32 s{S_RANK}, 11\ns_cselect_b32 s{S_SEG}, 1, 0\ns_mul_i32 s3, s{S_SEG}, 11\ns_sub_u32 s{S_CU}, s{S_RANK}, s3")
    VS, VR_, VT = 2, 4, 16
    k(f"s_mul_i32 s30, s{S_WAVE}, {128 * 2752}\ns_lshl_b32 s3, s{S_CU}, 8\ns_add_u32 s30, s30, s3\ns_add_u32 s31, s30, {64 * 2752}")
    k(f"s_lshl_b32 s33, s{S_WAVE}, 12")
    qkv_setup(k, 0, VS, VR_, VT, rotate=False, stride=2752)
    units = []
    for m, ptr in (("g", P_WG), ("u", P_WU)):
        units += qkv_units(k, ptr, 30, VS, VR_, lambda u, t, m=m: W[m][(u, t)], stride=2752)
    run_units(k, units, [0, 16384, 32768], 33, S_T, VT, mod="")
    lane_addr(k, L16, VT, 0, add=[(0, 6, 16)])
    k(f"v_mov_b32 v{ZERO}, 0\ns_mov_b32 s{S_BUF}, 0")
    k1 = -2 * math.sqrt(2 / math.pi) * math.log2(math.e)
    k(f"s_mov_b32 s{S_K2}, {f2u(k1 * 0.044715):#x}\nv_mov_b32 v118, {f2u(k1):#x}")
    poll_word(k, DBG, ZERO, 0, 20, N_LN, 48, imm=DBG_LN, sleep=2)
    xn_dma(k, S_SEG, S_BUF, S_T, L16)
    k.label("L_ffn_loop", vm=0, lgkm=0)
    k.wait(vm=0)
    k("s_barrier")
    k(f"v_add_u32 v{A0}, s{S_BUF}, v{L16}")
    k(f"s_xor_b32 s{S_BUF}, s{S_BUF}, 32768\ns_add_u32 s{S_NX}, s{S_SEG}, 2\ns_min_u32 s{S_NX}, s{S_NX}, 63")
    xn_dma(k, S_NX, S_BUF, S_T, L16)
    AG, AU, XF, T0 = 0, 16, 48, 64

    def per_kk(kk, xf):
        return [mf(a + 8 * tau + 4 * u, wf(m, u, kk), xf(tau), kk == 0)
                for tau in range(2) for u in range(2) for m, a in (("g", AG), ("u", AU))]
    token_gemm(k, A0, XF, per_kk)
    k(f"s_mul_i32 s{S_T}, s{S_SEG}, {88 * 1024}\ns_lshl_b32 s3, s{S_CU}, 2\ns_add_u32 s3, s3, s{S_WAVE}\ns_lshl_b32 s3, s3, 10")
    k(f"s_add_u32 s{S_T}, s{S_T}, s3\ns_add_u32 s{S_T}, s{S_T}, {WS_H:#x}")
    for tau in range(2):
        rs = range(8 * tau, 8 * tau + 8)
        steps = (lambda r: f"v_mul_f32 v{T0 + r}, v{AG + r}, v{AG + r}",
                 lambda r: f"v_fma_f32 v{T0 + r}, v{T0 + r}, s{S_K2}, v118",
                 lambda r: f"v_mul_f32 v{T0 + r}, v{T0 + r}, v{AG + r}",
                 lambda r: f"v_exp_f32 v{T0 + r}, v{T0 + r}",
                 lambda r: f"v_add_f32 v{T0 + r}, 1.0, v{T0 + r}",
                 lambda r: f"v_rcp_f32 v{T0 + r}, v{T0 + r}",
                 lambda r: f"v_mul_f32 v{T0 + r}, v{T0 + r}, v{AG + r}",
                 lambda r: f"v_mul_f32 v{T0 + r}, v{T0 + r}, v{AU + r}")
        for st in steps:
            for r in rs:
                k(st(r))
        for r in range(4):
            k(pack(T0 + 8 * tau + r, T0 + 8 * tau + r, T0 + 8 * tau + 4 + r))
        k(f"buffer_store_dwordx4 {vr(T0 + 8 * tau, 4)}, v{L16}, {WS}, s{S_T} offen sc1")
        k(f"s_add_u32 s{S_T}, s{S_T}, {44 * 1024}")
    k(f"s_lshl_b32 s{S_T}, s{S_SEG}, 5\ns_add_u32 s{S_T}, s{S_T}, s{S_CU}\ns_lshl_b32 s{S_T}, s{S_T}, 2\ns_add_u32 s{S_T}, s{S_T}, {WS_FH:#x}")
    raise_flag(k, f"s{S_T}", ZERO, 20)
    k(f"s_add_u32 s{S_SEG}, s{S_SEG}, 2\ns_cmp_lt_u32 s{S_SEG}, 64\ns_cbranch_scc1 L_ffn_loop\ns_branch L_exit")


def col_role(k, opt):
    S_SEG, S_TH, S_SL, S_T, S_B, S_U = 25, 27, 28, 34, 35, 36
    S_OFF = 40
    AS, AB, G, X = 128, 136, 144, 152
    L16, ZERO, AFH, AFO, AOUT, ARW, TMP = 156, 157, 158, 159, 160, 161, 162
    WD = 168
    k.fresh()
    k.label("L_col")
    ln_phase(k, opt)
    if "col" in opt.get("ln_only", ()):
        k("s_branch L_exit")
    k(f"s_and_b32 s{S_TH}, s{S_RANK}, 1\ns_lshr_b32 s{S_SL}, s{S_RANK}, 1\ns_lshl_b32 s33, s{S_WAVE}, 12")
    VS, VR_, VT = 2, 4, 16
    lane_addr(k, VS, VT, 0, add=[(0, 2, 16), (2, 1, 16 * 1024), (3, 1, 1024), (4, 2, 4096)])
    lane_addr(k, VR_, VT, 0, add=[(0, 6, 16), (6, 2, 4096)])
    units = []
    for m in range(6):
        nn = [n0 for n0 in range(2) if 2 * m + n0 < 11]
        units.append(dict(dma=[(VS, S_B, (32 * (2 * m + n0) + 2 * y) * 1024) for n0 in nn for y in range(2)],
                          reads=[(VR_, (2 * n0 + y) * 1024 + 8 * u, WD + 8 * (2 * m + n0) + 4 * u + 2 * y)
                                 for n0 in nn for y in range(2) for u in range(2)]))

    def pre_d():
        srd(k, SRD_W, P_WD, 1376 * 1024)
        k(f"s_mul_i32 s{S_B}, s{S_WAVE}, {11 * 32 * 1024}\ns_lshl_b32 s3, s{S_SL}, 6\ns_add_u32 s{S_B}, s{S_B}, s3")
    units[0]["pre"] = pre_d
    for m in range(16):
        def pre_o(m=m):
            if m == 0:
                srd(k, SRD_W, P_WO, 4096 * 1024)
                k(f"s_lshl_b32 s{S_B}, s{S_WAVE}, 20\ns_lshl_b32 s3, s{S_SL}, 6\ns_add_u32 s{S_B}, s{S_B}, s3")
            k(f"s_xor_b32 s{S_U}, s{S_SL}, {m}\ns_lshl_b32 s{S_U}, s{S_U}, 16\ns_add_u32 s{S_U}, s{S_U}, s{S_B}")
        units.append(dict(pre=pre_o, dma=[(VS, S_U, (32 * n0 + 2 * y) * 1024) for n0 in range(2) for y in range(2)],
                          reads=[(VR_, (2 * n0 + y) * 1024 + 8 * u, 256 + 8 * (2 * m + n0) + 4 * u + 2 * y)
                                 for n0 in range(2) for y in range(2) for u in range(2)]))
    run_units(k, units, [0, 16384, 32768], 33, S_T, VT, mod="")

    lane_addr(k, L16, VT, 0, add=[(0, 6, 16)])
    lane_addr(k, ARW, VT, 0, add=[(0, 6, 16), (6, 2, 2048)])
    lane_addr(k, AFO, VT, 0, add=[(0, 3, 4), (6, 2, 32)])
    lane_addr(k, AFH, VT, 0, add=[(0, 4, 4)])
    lane_addr(k, AOUT, VT, 0, add=[(0, 4, 1024), (4, 2, 16)])
    k(f"v_min_u32 v{AFH}, 40, v{AFH}\nv_mov_b32 v{ZERO}, 0")
    k(f"s_lshl_b32 s3, s{S_TH}, 14\ns_lshl_b32 s{S_T}, s{S_SL}, 6\ns_add_u32 s3, s3, s{S_T}\nv_add_u32 v{AOUT}, s3, v{AOUT}")
    srd(k, SRD_A, P_X, 2048 * 1024)
    srd(k, SRD_W, P_OUT, 2048 * 1024)
    k(f"s_sub_u32 s{S_SEG}, s{S_LIST}, 4")
    k(f"s_lshl_b32 s{S_B}, s{S_TH}, 17\ns_lshl_b32 s3, s{S_WAVE}, 15\ns_add_u32 s{S_B}, s{S_B}, s3\ns_lshl_b32 s3, s{S_SEG}, 18")
    k(f"s_add_u32 s{S_B}, s{S_B}, s3\ns_add_u32 s{S_B}, s{S_B}, {WS_O:#x}")
    for m in range(16):
        k(f"s_xor_b32 s3, s{S_SL}, {m}\ns_lshl_b32 s3, s3, 11\ns_add_u32 s{S_OFF + m}, s{S_B}, s3")
    poll_word(k, DBG, ZERO, 0, TMP, N_LN, 64, imm=DBG_LN, sleep=2)

    def gather(acc, off, lab):
        k(f"ds_write_b128 v{ARW}, {vr(acc, 4)} offset:{off}\nds_write_b128 v{ARW}, {vr(acc + 4, 4)} offset:{off + 1024}")
        k.wait(lgkm=0)
        k(f"s_barrier\ns_cmp_lg_u32 s{S_WAVE}, 0\ns_cbranch_scc1 {lab}")
        for i in range(6):
            k(f"ds_read_b128 {vr(4 * i, 4)}, v{L16} offset:{off + 2048 + 1024 * i}")
        for w in range(3):
            for r in range(0, 8, 2):
                k(f"v_pk_add_f32 {vr(acc + r, 2)}, {vr(acc + r, 2)}, {vr(8 * w + r, 2)}")

    k.label("L_col_loop", vm=0, lgkm=0)
    k(f"s_lshl_b32 s{S_U}, s{S_SEG}, 7\ns_add_u32 s{S_T}, s{S_U}, {WS_FH:#x}")
    poll_word(k, WS, AFH, f"s{S_T}", TMP, 1, 65, sleep=2)
    k(f"s_lshl_b32 s{S_T}, s{S_SEG}, 1\ns_add_u32 s{S_T}, s{S_T}, s{S_TH}\ns_lshl_b32 s{S_T}, s{S_T}, 2\ns_add_u32 s{S_T}, s{S_T}, s{S_WAVE}")
    k(f"s_mul_i32 s{S_T}, s{S_T}, {11 * 1024}\ns_add_u32 s{S_T}, s{S_T}, {WS_H:#x}")
    for n in range(11):
        if n and n % 4 == 0:
            k(f"s_add_u32 s{S_T}, s{S_T}, 4096")
        k(f"buffer_load_dwordx4 {vr(4 * n, 4)}, v{L16}, {WS}, s{S_T} offen offset:{(n % 4) * 1024} sc1")
    k(f"s_lshl_b32 s{S_T}, s{S_SEG}, 15\nbuffer_load_dwordx4 {vr(X, 4)}, v{AOUT}, {SA}, s{S_T} offen")
    for n in range(11):
        for u in range(2):
            k(mf(AB + 4 * u, WD + 8 * n + 4 * u, 4 * n, n == 0))
    gather(AB, 0, "L_col_g")
    for r in range(8):
        k(f"v_mul_f32 v{G + r}, {f2u(-math.log2(math.e)):#x}, v{AB + r}")
    for op in ("v_exp_f32 v{0}, v{0}", "v_add_f32 v{0}, 1.0, v{0}", "v_rcp_f32 v{0}, v{0}"):
        for r in range(8):
            k(op.format(G + r))
    for r in range(8):
        k(f"v_mul_f32 v{G + r}, v{G + r}, v{AB + r}")
    k.label("L_col_g")
    k(f"s_add_u32 s{S_T}, s{S_U}, {WS_FO:#x}")
    poll_word(k, WS, AFO, f"s{S_T}", TMP, 1, 66, sleep=1)
    for n in range(32):
        k(f"buffer_load_dwordx4 {vr(4 * n, 4)}, v{L16}, {WS}, s{S_OFF + (n >> 1)} offen offset:{(n & 1) * 1024} sc1")
    for m in range(16):
        k(f"s_add_u32 s{S_OFF + m}, s{S_OFF + m}, {3 << 18:#x}")
    for n in range(32):
        for u in range(2):
            k(mf(AS + 4 * u, 256 + 8 * n + 4 * u, 4 * n, n == 0))
    gather(AS, 8192, "L_col_next")
    for i in range(4):
        k(f"v_lshlrev_b32 v{2 * i}, 16, v{X + i}\nv_and_b32 v{2 * i + 1}, 0xffff0000, v{X + i}")
    for r in range(8):
        k(f"v_fmac_f32 v{r}, v{AS + r}, v{G + r}")
    for i in range(4):
        k(pack(AS + i, 2 * i, 2 * i + 1))
    k(f"s_lshl_b32 s{S_T}, s{S_SEG}, 15\nbuffer_store_dwordx4 {vr(AS, 4)}, v{AOUT}, {SW}, s{S_T} offen")
    k.label("L_col_next")
    k(f"s_add_u32 s{S_SEG}, s{S_SEG}, 3\ns_cmp_lt_u32 s{S_SEG}, 64\ns_cbranch_scc1 L_col_loop\ns_branch L_exit")


def workers(k, opt):
    k.on_mfma = None
    if "proj" in opt["roles"]:
        proj_role(k, opt)
    if "ffn" in opt["roles"]:
        ffn_role(k, opt)
    if "col" in opt["roles"]:
        col_role(k, opt)
```

```python
import struct, math, sys
from common import *
import team as T

HEADER = open("recurrent_scan__memory_aug_recurrent_mem_tr__geglu_ffn__prompt.s.ref").read().split("; Override launch")[0]


def f2u(x):
    return struct.unpack("<I", struct.pack("<f", x))[0]


def entry(k, opt):
    k("s_cmp_ge_u32 s2, 256\ns_cbranch_scc1 L_end")
    if opt.get("total"):
        k("s_memrealtime s[100:101]")
    k(f"s_load_dwordx16 s[{PTR}:{PTR+15}], s[0:1], 0")
    k(f"s_load_dwordx8 s[{PTR+16}:{PTR+23}], s[0:1], 64")
    k(f"s_load_dwordx4 s[{PTR+24}:{PTR+27}], s[0:1], 96")
    k(f"s_getreg_b32 s{S_LIST}, hwreg(HW_REG_XCC_ID, 0, 3)")
    if opt.get("fake_xcc"):
        k(opt["fake_xcc"])
    k(f"v_lshrrev_b32 v1, 6, v0\ns_mov_b32 s{S_FOREIGN}, 0\ns_mov_b32 s{S_BUDGET}, {BUDGET}\nv_readfirstlane_b32 s{S_WAVE}, v1")
    k("v_mov_b32 v2, 0")
    k.wait(lgkm=0)
    srd(k, SRD_WS, P_WS, WS_SIZE)
    srd(k, SRD_DBG, P_DBG, 256)
    k(f"s_cmp_lg_u32 s{S_WAVE}, 0\ns_cbranch_scc1 L_claimed")
    k("s_mov_b64 exec, 1")
    k.label("L_claim")
    k(f"v_mov_b32 v1, 1\ns_lshl_b32 s3, s{S_LIST}, 5")
    k(f"buffer_atomic_add v1, v2, {DBG}, s3 offen sc0 sc1")
    k(f"v_readfirstlane_b32 s{S_RANK}, v1")
    k(f"s_cmp_lt_u32 s{S_RANK}, 32\ns_cbranch_scc1 L_got")
    k(f"s_add_u32 s{S_LIST}, s{S_LIST}, 1\ns_and_b32 s{S_LIST}, s{S_LIST}, 7\ns_add_u32 s{S_FOREIGN}, s{S_FOREIGN}, 1")
    k(f"s_cmp_lt_u32 s{S_FOREIGN}, 8\ns_cbranch_scc1 L_claim")
    k(f"s_mov_b32 s{S_LIST}, 8\ns_mov_b32 s{S_RANK}, 0")
    k.label("L_got")
    k(f"s_lshl_b32 s3, s{S_LIST}, 8\ns_or_b32 s3, s3, s{S_RANK}\ns_lshl_b32 s{S_FOREIGN}, s{S_FOREIGN}, 16\ns_or_b32 s3, s3, s{S_FOREIGN}")
    k("v_mov_b32 v1, s3\nds_write_b32 v2, v1\ns_mov_b64 exec, -1")
    k.wait(lgkm=0)
    k.label("L_claimed")
    k("s_barrier\nds_read_b32 v1, v2")
    k("v_readfirstlane_b32 s3, v1")
    k(f"s_and_b32 s{S_RANK}, s3, 31\ns_bfe_u32 s{S_LIST}, s3, 0x40008\ns_lshr_b32 s{S_FOREIGN}, s3, 16")
    roles = opt["roles"]
    far = []
    for lo, hi, lab in ((0, 1, "team"), (1, 4, "proj"), (4, 7, "col"), (7, 8, "ffn")):
        k(f"s_cmp_lt_u32 s{S_LIST}, {hi}\ns_cbranch_scc1 {'L_' + lab if lab in roles else 'L_exit'}")
    k.label("L_exit")
    if opt.get("total"):
        k.fresh()
        k("s_memrealtime s[98:99]\ns_memtime s[90:91]\ns_mov_b64 exec, 1")
        k(f"s_lshl_b32 s3, s{S_LIST}, 5\ns_add_u32 s3, s3, s{S_RANK}\ns_lshl_b32 s3, s3, 2\ns_add_u32 s3, s3, s{S_WAVE}\ns_lshl_b32 s3, s3, 5")
        k(f"s_add_u32 s3, s3, {WS_STAMP + 0x100000:#x}\nv_mov_b32 v2, 0")
        k.wait(lgkm=0)
        k("v_mov_b32 v4, s100\nv_mov_b32 v5, s98\nv_mov_b32 v6, s96\nv_mov_b32 v7, s94")
        k(f"buffer_store_dwordx4 v[4:7], v2, {WS}, s3 offen")
        k(f"s_sub_u32 s90, s90, s92\nv_mov_b32 v8, s90\nv_mov_b32 v9, s{S_BUDGET}\nv_mov_b32 v10, s52")
        k(f"buffer_store_dwordx3 v[8:10], v2, {WS}, s3 offen offset:16")
    k.label("L_end")
    k("s_endpgm")
    k.fresh()
    k.label("L_timeout")
    k(f"s_mov_b64 exec, 1\nv_mov_b32 v1, s3\nv_mov_b32 v2, 0")
    k(f"buffer_store_dword v1, v2, {DBG}, 0 offen offset:{DBG_ERR}")
    k("s_endpgm")


def generate(**opt):
    opt.setdefault("roles", ("team", "proj", "col", "ffn"))
    opt["c_bits"] = f2u(128 ** -0.5 * math.log2(math.e))
    k = Emit()
    entry(k, opt)
    if "team" in opt["roles"]:
        T.team(k, opt)
    if set(opt["roles"]) - {"team"}:
        import workers as W
        W.workers(k, opt)
    out = HEADER + "; @launch grid=(256,1,1) block=(256,1,1) lds=163840\n"
    out += f'.amdgcn_target "amdgcn-amd-amdhsa--gfx950"\n.text\n.globl {NAME}\n.p2align 8\n.type {NAME},@function\n{NAME}:\n'
    out += k.text()
    out += f""".section .rodata,"a"
.p2align 6
.amdhsa_kernel {NAME}
  .amdhsa_next_free_vgpr 512
  .amdhsa_next_free_sgpr 102
  .amdhsa_accum_offset 256
  .amdhsa_group_segment_fixed_size 0
  .amdhsa_kernarg_size 112
  .amdhsa_user_sgpr_count 2
  .amdhsa_user_sgpr_kernarg_segment_ptr 1
  .amdhsa_system_sgpr_workgroup_id_x 1
.end_amdhsa_kernel
"""
    return out


if __name__ == "__main__":
    path = sys.argv[1] if len(sys.argv) > 1 else "recurrent_scan__memory_aug_recurrent_mem_tr__geglu_ffn__prompt.s"
    open(path, "w").write(generate())
```

```python
from loader import *

L_MEM, L_KX, L_XB, L_SEL, L_SIX, L_W = 0, 8192, 24576, 28928, 29952, 32768
XROW = 544
LIMIT = 0x42000000

MF = 0
RING = 32
ACCV = 56
QF = 64
ACCQ, ACCK = 80, 88
ACCO = 80
VX = 96
ONES = 104
SM = 108
PM, ZERO, VM0, IDX, VM1, AL16 = 112, 113, 114, 115, 116, 117
Z2, FA, FD, FS, AW, APST, AMST, AXW, AXQ, FLAG = 118, 119, 120, 121, 122, 123, 124, 125, 126, 127
SIX = VX + 4

S_STEP, S_M0, S_M1, S_MST, S_MRS = 25, 26, 27, 28, 29
S_FW, S_FR, S_REP, S_CK = 47, 53, 42, 16
S_PST, S_OX, S_PLD, S_PB, S_PC, S_MGS, S_PRS = 30, 34, 38, 42, 44, 45, 46
S_VX, S_KX, S_MG, S_FLAG, S_PUB, S_F0, S_F1, S_C, S_T, S_HF, S_KM0 = 48, 49, 50, 51, 52, 54, 55, 56, 57, 58, 60
S_AUX, S_VM0, S_PR, S_OOB = 61, 62, 63, 52

QLDS = {(0, 0): (0, 32), (1, 0): (1, 40), (0, 1): (2, 48), (1, 1): (3, 64), (0, 2): (4, 72), (1, 7): (5, 32)}
OLDS = {0: (6, 32), 1: (7, 40), 2: (8, 48), 3: (9, 0), 4: (10, 8), 5: (11, 16), 6: (12, 24), 7: (13, 56),
        14: (14, 32), 15: (15, 40)}
_res = iter(range(128, 512, 8))
QREG = {(u, t): next(_res) for u in range(2) for t in range(8) if (u, t) not in QLDS}
OREG = {n: next(_res) for n in range(16) if n not in OLDS}
KREG = {(u, t): next(_res) for u in range(2) for t in range(8)}
VREG = {(u, t): next(_res) for u in range(2) for t in range(8)}


def smf(acc, a, b):
    return f"v_smfmac_f32_16x16x64_bf16 {vr(acc, 4)}, {vr(a, 4)}, {ur(b, 8)}, v{IDX} abid:1"


def Q(u, t):
    return smf(ACCQ + 4 * u, MF + 4 * t, QLDS[(u, t)][1] if (u, t) in QLDS else QREG[(u, t)])


def Kk(u, t):
    return smf(ACCK + 4 * u, MF + 4 * t, KREG[(u, t)])


def V(u, t):
    return smf(ACCV + 4 * u, MF + 4 * t, VREG[(u, t)])


OSEQ = [(x, 0) for x in range(4)] + [(x, ks) for x in range(4) for ks in range(1, 4)]


def O(n):
    x, ks = OSEQ[n]
    return smf(ACCO + 4 * x, QF + 4 * ks, OLDS[n][1] if n in OLDS else OREG[n])


def wread(slot, reg, half):
    return f"ds_read_b128 {vr(reg + 4 * half, 4)}, v{AW} offset:{slot * 2048 + half * 1024}"


def dense(acc, a, b, first):
    return f"v_mfma_f32_16x16x32_bf16 {vr(acc, 4)}, {vr(a, 4)}, {vr(b, 4)}, {'0' if first else vr(acc, 4)}"


def prep_next(k, part=None):
    if part != 1:
        for (u, t), (slot, reg) in QLDS.items():
            if (u, t) != (1, 7):
                k(wread(slot, reg, 0))
                k(wread(slot, reg, 1))
    if part != 0:
        for r in list(range(ACCQ, ACCQ + 16, 2)) + list(range(ACCV, ACCV + 8, 2)):
            k(f"v_mov_b64 {vr(r, 2)}, 0")


def shot2(k):
    k(f"buffer_load_dwordx4 {vr(MF, 4)}, v{AL16}, {WS}, s{S_M0} offen sc1", nowait=True)
    k(f"buffer_load_dwordx4 {vr(MF + 4, 4)}, v{AL16}, {WS}, s{S_M1} offen sc1", nowait=True)


def advance(k, w, p):
    k(f"s_mov_b32 s{S_MST}, s{S_MRS}\ns_add_u32 s{S_MRS}, s{S_MRS}, 0x2000\ns_bitset0_b32 s{S_MRS}, 15")
    k(f"s_add_u32 m0, s{S_KM0}, {(1 - p) * 8192}")
    if w == 0:
        k(f"v_mov_b32 v{SM}, -1")


def team_prologue(k, opt):
    tid = 0
    VS, VR_, VT = 2, 4, 16
    k(f"s_lshr_b32 s3, s{S_RANK}, 2")
    k(f"s_lshl_b32 s{S_T}, s{S_WAVE}, 1\ns_xor_b32 s{S_F0}, s{S_T}, s3\ns_xor_b32 s{S_F1}, s{S_F0}, 1")
    k(f"s_lshl_b32 s{S_T}, s{S_RANK}, 8")
    k(f"s_lshl_b32 s30, s{S_F0}, 19\ns_add_u32 s30, s30, s{S_T}\ns_lshl_b32 s31, s{S_F1}, 19\ns_add_u32 s31, s31, s{S_T}")
    k(f"s_lshl_b32 s32, s{S_RANK}, 17\ns_lshl_b32 s{S_T}, s{S_WAVE}, 8\ns_add_u32 s32, s32, s{S_T}")
    k(f"s_lshl_b32 s33, s{S_WAVE}, 12")
    for ks in range(4):
        k(f"s_xor_b32 s3, s{S_WAVE}, {ks}\ns_lshl_b32 s3, s3, 15\ns_add_u32 s{34 + ks}, s32, s3")
    k(f"s_lshl_b32 s{S_F0}, s{S_F0}, 10\ns_lshl_b32 s{S_F1}, s{S_F1}, 10")
    lane_addr(k, AL16, VT, tid, add=[(0, 6, 16)])
    lane_addr(k, AW, VT, tid, add=[(0, 6, 16), (6, 2, 32768)], const=L_W)
    lane_addr(k, AMST, VT, tid, add=[(0, 2, 4), (2, 1, 256), (3, 1, 64), (4, 2, 16)])
    k(f"s_lshr_b32 s3, s{S_RANK}, 1\ns_lshl_b32 s3, s3, 9\ns_and_b32 s{S_T}, s{S_RANK}, 1\ns_lshl_b32 s{S_T}, s{S_T}, 7")
    k(f"s_add_u32 s3, s3, s{S_T}\nv_add_u32 v{AMST}, s3, v{AMST}")

    k(f"s_lshl_b32 s{S_PRS}, s{S_RANK}, 13\ns_lshl_b32 s{S_T}, s{S_WAVE}, 11\ns_add_u32 s{S_PRS}, s{S_PRS}, s{S_T}")
    k(f"s_add_u32 s{S_PRS}, s{S_PRS}, {WS_P:#x}")
    for r in range(4):
        k(f"v_mov_b32 v{SM + r}, -1")
    for i in range(2):
        k(f"buffer_store_dwordx4 {vr(SM, 4)}, v{AL16}, {WS}, s{S_PRS} offen offset:{i * 1024} sc1")
    k(f"s_lshl_b32 s{S_T}, s{S_WAVE}, 13\ns_add_u32 s{S_T}, s{S_T}, {WS_M:#x}")
    k(f"buffer_store_dword v{SM}, v{AMST}, {WS}, s{S_T} offen sc1")
    k(f"s_lshl_b32 s3, s{S_RANK}, 2\ns_add_u32 s{S_FW}, s3, {WS_F1:#x}\nv_mov_b32 v{ZERO}, 0")
    k(f"s_mov_b32 s{S_REP}, 0x01010101\ns_mov_b32 s{S_REP + 1}, 0x01010101\ns_mov_b64 exec, s[{S_REP}:{S_REP + 1}]")
    for i in range(2):
        k(f"buffer_store_dword v{ZERO}, v{AL16}, {WS}, s{S_FW} offen offset:{i * (WS_F2 - WS_F1)} sc1")
    k("s_mov_b64 exec, -1")

    qkv_setup(k, tid, VS, VR_, VT, rotate=True)
    VSO, VRO = 12, 40
    lane_addr(k, VSO, VT, tid, xor=[(0, 4, 16), (4, 2, 64)], add=[(4, 1, 16 * 1024), (5, 1, 2 * 1024)])
    lane_addr(k, VRO, VT, tid, xor=[(0, 1, 8), (1, 1, 16), (3, 1, 32), (2, 1, 256 + 64), (4, 1, 512 + 128), (5, 1, 1024),
                                    (6, 2, 4096)])
    k(f"s_lshr_b32 s3, s{S_RANK}, 3\ns_lshl_b32 s3, s3, 6\nv_xor_b32 v{VRO}, s3, v{VRO}")
    for x in range(1, 4):
        k(f"v_xor_b32 v{VRO + x}, {64 * x}, v{VRO}")

    def arrive():
        lab = k.newlabel("arr")
        k(f"s_cmp_lg_u32 s{S_WAVE}, 0\ns_cbranch_scc1 {lab}")
        k(f"s_lshl_b32 s3, s{S_FOREIGN}, 16\ns_add_u32 s3, s3, 1\nv_mov_b32 v13, s3\nv_mov_b32 v14, 0\ns_mov_b64 exec, 1")
        k(f"buffer_atomic_add v13, v14, {DBG}, 0 offen offset:{DBG_TEAM} sc1\ns_mov_b64 exec, -1")
        k.label(lab)

    units = []
    units += qkv_units(k, P_WQ, 30, VS, VR_, lambda u, t: ("lds", QLDS[(u, t)][0] * 2048) if (u, t) in QLDS else QREG[(u, t)])
    ou = []
    for ks in range(4):
        for Y in range(2):
            dma = [(VSO, 34 + ks, (8 * Y + (d >> 1) + 4 * (d & 1)) * 1024) for d in range(4)]
            reads = []
            for y0 in range(2):
                for x in range(4):
                    n = OSEQ.index((x, ks))
                    d = ("lds", OLDS[n][0] * 2048 + Y * 1024 + y0 * 8) if n in OLDS else OREG[n] + 4 * Y + 2 * y0
                    reads.append((VRO + x, y0 * 2048, d))
            ou.append(dict(dma=dma, reads=reads))
    ou[0]["pre"] = lambda: srd(k, SRD_W, P_WO, 4096 * 512 * 2)
    units += ou
    units += qkv_units(k, P_WK, 30, VS, VR_, lambda u, t: KREG[(u, t)])
    units += qkv_units(k, P_WV, 30, VS, VR_, lambda u, t: VREG[(u, t)])
    first_pre = units[0]["pre"]
    units[0]["pre"] = lambda: (arrive(), first_pre())
    run_units(k, units, [0, 16384], 33, S_T, VT, aW=AW, mod=opt.get("wmod", "nt"))

    if opt.get("total"):
        k("s_memrealtime s[94:95]")
    lane_addr(k, FA, VT, tid, add=[(0, 5, 4)])
    k(f"v_mov_b32 v{Z2}, 0\nv_mov_b32 v{FD}, 0\nv_mov_b32 v{FS}, 0\nv_mov_b32 v{FLAG}, 0")
    lane_addr(k, APST, VT, tid, add=[(0, 5, 8), (5, 1, 8192)])
    lane_addr(k, AXW, VT, tid, add=[(0, 4, 4), (4, 2, 2 * XROW), (6, 2, 64)], const=L_XB)
    lane_addr(k, AXQ, VT, tid, add=[(0, 1, XROW), (2, 2, 2 * XROW), (4, 2, 16)], const=L_XB)
    k(f"s_mov_b32 s{S_HF}, 0xcccccccc\ns_mov_b32 s{S_HF+1}, 0xcccccccc")
    k(f"v_mov_b32 v{IDX}, 0x44440000\nv_mov_b32 v{VT}, 0xeeee0010\nv_cndmask_b32 v{IDX}, v{IDX}, v{VT}, s[{S_HF}:{S_HF+1}]")
    k(f"v_mov_b32 v{ZERO}, 0")
    for r in range(4):
        k(f"v_mov_b32 v{ONES + r}, 0x3f803f80")
    lane_addr(k, 20, VT, tid, add=[(3, 1, 1), (1, 1, 2)])
    lane_addr(k, 21, VT, tid, add=[(0, 1, 16)])
    k(f"v_mov_b32 v22, 0x3f80\nv_lshlrev_b32 v21, v21, v22")
    for a in range(4):
        k(f"v_cmp_eq_u32 vcc, {a & 1}, v20\nv_cndmask_b32 v{24 + a}, 0, v21, vcc")
    lane_addr(k, 28, VT, tid, add=[(2, 1, 0xaaaa)], const=0x4444)
    k(f"ds_write_b128 v{AL16}, v[24:27] offset:{L_SEL}")
    k(f"ds_write_b32 v{AL16}, v28 offset:{L_SIX}")
    k(f"s_mov_b32 s{S_C}, {opt['c_bits']:#x}")
    k(f"s_lshr_b32 s3, s{S_RANK}, 3")
    for x in range(4):
        k(f"s_xor_b32 s{S_T}, s3, {x}\ns_lshl_b32 s{S_T}, s{S_T}, 14\ns_lshl_b32 s{S_PST + x}, s{S_WAVE}, 16")
        k(f"s_add_u32 s{S_PST + x}, s{S_PST + x}, s{S_T}\ns_lshl_b32 s{S_T}, s{S_RANK}, 8")
        k(f"s_add_u32 s{S_PST + x}, s{S_PST + x}, s{S_T}\ns_add_u32 s{S_PST + x}, s{S_PST + x}, {WS_P:#x}")
    k(f"s_bfe_u32 s3, s{S_RANK}, 0x20001")
    for x in range(4):
        k(f"s_xor_b32 s{S_T}, s3, {x}\ns_lshl_b32 s{S_T}, s{S_T}, 11\ns_lshl_b32 s{S_PLD + x}, s{S_RANK}, 13")
        k(f"s_add_u32 s{S_PLD + x}, s{S_PLD + x}, s{S_T}\ns_add_u32 s{S_PLD + x}, s{S_PLD + x}, {WS_P:#x}")
    k(f"s_and_b32 s3, s{S_RANK}, 7\ns_lshl_b32 s3, s3, 7\ns_add_u32 s{S_FR}, s3, {WS_F1:#x}")
    k(f"s_lshl_b32 s{S_KX}, s{S_RANK}, 14\ns_lshl_b32 s{S_KM0}, s{S_WAVE}, 11\ns_add_u32 s{S_KX}, s{S_KX}, s{S_KM0}")
    k(f"s_add_u32 s{S_KX}, s{S_KX}, {WS_KV:#x}\ns_add_u32 s{S_VX}, s{S_KX}, 8192\ns_add_u32 s{S_KM0}, s{S_KM0}, {L_KX}")
    k(f"s_lshl_b32 s{S_FLAG}, s{S_RANK}, 8\ns_add_u32 s{S_FLAG}, s{S_FLAG}, {WS_FKV:#x}")
    k(f"s_add_u32 s{S_M0}, s{S_F0}, {WS_MG:#x}\ns_add_u32 s{S_M1}, s{S_F1}, {WS_MG:#x}")
    k(f"s_mov_b32 s{S_MG}, {WS_SIZE:#x}")
    k(f"s_mov_b32 s{S_MRS}, {WS_M + 0x2000:#x}")
    k(f"s_mov_b32 s{S_STEP}, 0\ns_mov_b32 s{S_OOB}, 0")

    poll_word(k, DBG, ZERO, 0, 20, N_LN, 1, imm=DBG_LN)
    poll_word(k, DBG, ZERO, 0, 20, 32, 2, mask=0xffff, imm=DBG_TEAM)
    k(f"v_readfirstlane_b32 s{S_FOREIGN}, v20")
    k(f"s_lshr_b32 s{S_FOREIGN}, s{S_FOREIGN}, 16")
    k(f"v_lshrrev_b32 v22, 2, v{AL16}\nv_min_u32 v22, 4, v22")
    poll_word(k, WS, 22, f"s{S_FLAG}", 20, 1, 3)
    k(f"s_add_u32 s{S_FLAG}, s{S_FLAG}, 8")
    k(f"s_mov_b32 m0, s{S_KM0}")
    for i in range(2):
        k(f"buffer_load_dwordx4 v{AL16}, {WS}, s{S_KX} offen offset:{i * 1024} sc1 lds")
        k(f"buffer_load_dwordx4 {vr(VX + 4 * i, 4)}, v{AL16}, {WS}, s{S_VX} offen offset:{i * 1024} sc1")
    k(f"s_add_u32 s{S_KX}, s{S_KX}, 0x80000\ns_add_u32 s{S_VX}, s{S_VX}, 0x80000")
    prep_next(k)
    if opt.get("total"):
        k("s_memrealtime s[96:97]\ns_memtime s[92:93]")
    k.wait(vm=0, lgkm=0)
    advance(k, 0, 0)
    shot2(k)
    k.wait(vm=0)


def team_step(k, w, p, st, tag, opt):
    stamp = opt.get("stamp")
    kvstep = opt.get("kvstep", 0x80000)
    comm = not opt.get("nocomm")

    def T(i):
        if stamp and i in stamp:
            j = stamp.index(i)
            k(f"s_memtime s[{92 + 2 * j}:{93 + 2 * j}]")
            if j == 0 and opt.get("real"):
                k("s_memrealtime s[100:101]")

    cnt = [0]

    def after_mfma():
        T(100 + cnt[0])
        cnt[0] += 1
    k.on_mfma = after_mfma if stamp else None

    KXR = {(0, 0): 40, (0, 1): 44, (1, 0): 48, (1, 1): 52, (2, 0): 32, (2, 1): 36, (3, 0): 40, (3, 1): 44}
    KMR = [48, 52, 32, 36]
    SX = ACCQ
    EX = SX + 4
    PX, AL, A0, A1 = QF, QF + 4, QF + 8, ACCK
    RA, SEL = SM, VX
    hf = f"s[{S_HF}:{S_HF+1}]"
    moff = lambda t: L_MEM + (t ^ (2 * w)) * 1024
    mread = lambda t: f"ds_read_b128 {vr(MF + 4 * t, 4)}, v{AL16} offset:{moff(t)}"
    mwrite = lambda t: f"ds_write_b128 v{AL16}, {vr(MF + 4 * t, 4)} offset:{moff(t)}"
    kxread = lambda ks, tau: f"ds_read_b128 {vr(KXR[(ks, tau)], 4)}, v{AL16} offset:{L_KX + p * 8192 + tau * 4096 + ks * 1024}"
    add2 = lambda acc, i: f"v_add_f32 v{acc + i}, v{acc + i}, v{acc + 2 + i}"
    cvt = lambda d, a, b: f"v_cvt_pk_bf16_f32 v{d}, v{a}, v{b}"
    pack = lambda acc, i: cvt(acc + i, acc + i, acc + 4 + i)
    sx = lambda ks, tau: dense(SX + 4 * tau, KXR[(ks, tau)], QF + 4 * ks, ks == 0)
    oh = lambda n, half: wread(OLDS[n][0], OLDS[n][1], half)
    xrd = lambda reg, off: f"ds_read_b128 {vr(reg, 4)}, v{AXQ} offset:{off}"
    xwr = lambda r, off: f"ds_write2_b32 v{AXW}, v{r}, v{r + 1} offset0:{off} offset1:{off + XROW // 4}"
    sel = lambda r: f"v_cndmask_b32 v{SX + r}, v{SX + r}, v{SX + 4 + r}, {hf}"
    ex = lambda d, r: f"v_exp_f32 v{d}, v{r}"
    W = lambda n: f"s_waitcnt lgkmcnt({n})"
    N = lambda n: f"s_nop {n - 1}"
    dma = lambda so, i: f"buffer_load_dwordx4 v{AL16}, {WS}, s{so} offen offset:{i * 1024} {opt.get('kvmod', 'sc1')} lds"
    d16 = lambda acc, b, c: f"v_mfma_f32_16x16x16_bf16 {vr(acc, 4)}, {vr(PM, 2)}, {vr(b, 2)}, {c}"
    s32 = lambda acc, b: f"v_smfmac_f32_16x16x32_bf16 {vr(acc, 4)}, {vr(PX, 2)}, {vr(b, 4)}, v{IDX} abid:2"
    only = lambda who, ins, alt="": ins if w == who else alt
    L = lambda name, pp=p: f"L_t{tag}{w}{pp}_{name}"

    def notice(hop):
        return (f"s_mov_b64 exec, s[{S_REP}:{S_REP + 1}]\n"
                f"buffer_store_dword v{FS}, v{AL16}, {WS}, s{S_FW} offen offset:{hop * (WS_F2 - WS_F1)} {st}\ns_mov_b64 exec, -1")

    def probe(hop):
        k(f"buffer_load_dword v{FD}, v{FA}, {WS}, s{S_FR} offen offset:{hop * (WS_F2 - WS_F1)} sc1", nowait=True)
        k.vm[-1] = []

    def spin(hop, code):
        lab, out = k.newlabel("spin"), k.newlabel("spun")
        k.label(lab)
        for i in range(opt.get("unroll", 24) if hop else 4):
            k(f"v_cmp_gt_u32 vcc, s{S_STEP}, v{FD}", nowait=True)
            probe(hop)
            k(f"s_cbranch_vccz {out}")
        spend(k, code)
        k(f"s_branch {lab}")
        k.label(out)

    k.label(L("again"), vm=0, lgkm=0)
    ex_ = 1 if stamp else 0
    T(8)
    k.wait(vm=1 + ex_, lgkm=0)
    T(0)
    k(mwrite(0))
    plan = [
        (Q(0, 0), [f"s_waitcnt vmcnt({ex_})", mwrite(1)]),
        (Q(0, 1), [N(3)]),
        (Q(1, 0), [N(3)]),
        (Kk(0, 0), [f"v_cmp_u_f32 vcc, v{ACCQ}, v{ACCQ + 1}"]),
        (Kk(1, 0), [f"v_cmp_u_f32 s[{S_CK}:{S_CK + 1}], v{ACCQ + 2}, v{ACCQ + 3}"]),
        (Q(1, 1), [f"s_or_b64 vcc, vcc, s[{S_CK}:{S_CK + 1}]", f"s_cbranch_scc1 {L('miss')}" if comm else N(1), L("cont") + ":",
                   W(0), "s_barrier"]),
        (Kk(0, 1), [mread(2)]),
        (Kk(1, 1), [mread(3), dma(S_KX, 0)]),
        (V(0, 0), [mread(4)]),
        (V(1, 0), [mread(5)]),
        (Q(0, 2), [mread(6)]),
        (Q(0, 3), [mread(7), dma(S_KX, 1)]),
        (Q(0, 4), [wread(5, 32, 0)]),
        (Q(0, 5), [wread(5, 32, 1)]),
        (Q(0, 6), [kxread(0, 0), W(3)]),
        (Q(0, 7), [f"s_movk_i32 m0, {L_MEM + w * 2048}", "s_barrier", dma(S_VX, 0)]),
        (Q(1, 2), [kxread(0, 1), f"s_add_u32 s{S_M0}, s{S_MST}, s{S_F0}"]),
        (Q(1, 3), [kxread(1, 0), add2(ACCQ, 0)]),
        (Q(1, 4), [only(0, f"buffer_store_dword v{FLAG}, v{AMST}, {WS}, s{S_MG} offen sc1"),
                   only(2, f"buffer_load_dword v{FLAG}, v{ZERO}, {WS}, s{S_FLAG} offen sc1"), add2(ACCQ, 1)]),
        (Q(1, 5), [dma(S_VX, 1), f"s_add_u32 s{S_M1}, s{S_MST}, s{S_F1}"]),
        (Q(1, 6), [kxread(1, 1), W(4)]),
        (Q(1, 7), [f"s_add_u32 s{S_KX}, s{S_KX}, {kvstep:#x}", f"s_add_u32 s{S_VX}, s{S_VX}, {kvstep:#x}", kxread(2, 0)]),
        (Kk(0, 2), [f"s_add_u32 s{S_STEP}, s{S_STEP}, 1", N(1), kxread(2, 1)]),
        (Kk(0, 3), [add2(ACCQ + 4, 0), add2(ACCQ + 4, 1)]),
        (Kk(0, 4), [pack(ACCQ, 0), pack(ACCQ, 1)]),
        (Kk(0, 5), [xwr(ACCQ, 0)]),
        (Kk(0, 6), [only(0, f"v_mov_b32 v{FS}, s{S_STEP}")]),
        (Kk(0, 7), [N(3)]),
        (Kk(1, 2), [N(2), only(0, f"buffer_store_dword v{SM}, v{AMST}, {WS}, s{S_MRS} offen {st}", N(1))]),
        (Kk(1, 3), [add2(ACCK, 0)]),
        (Kk(1, 4), [add2(ACCK, 1)]),
        (Kk(1, 5), [W(0), "s_barrier", xrd(QF, 0)]),
        (Kk(1, 6), [xrd(QF + 4, 64)]),
        (Kk(1, 7), [N(2), xrd(QF + 8, 128)]),
        (V(0, 1), [W(2), N(1), xrd(QF + 12, 192)]),
        (sx(0, 0), [add2(ACCK + 4, 0), add2(ACCK + 4, 1)]),
        (sx(0, 1), [W(1), cvt(ACCK + 4, ACCK, ACCK + 4), cvt(ACCK + 5, ACCK + 1, ACCK + 5)]),
        (sx(1, 0), [xwr(ACCK + 4, 64)]),
        (sx(1, 1), [f"v_mov_b64 {vr(A1, 2)}, 0", f"v_mov_b64 {vr(A1 + 2, 2)}, 0"]),
        (sx(2, 0), [kxread(3, 0)]),
        (sx(2, 1), [kxread(3, 1)]),
        (V(0, 2), []),
        (V(0, 3), [W(1)]),
        (sx(3, 0), ["s_barrier", W(0), xrd(KMR[0], 256)]),
        (sx(3, 1), [N(2), xrd(KMR[1], 320)]),
        (V(0, 4), [N(2), xrd(KMR[2], 384)]),
        (V(0, 5), [xrd(KMR[3], 448), W(3)]),
        (dense(SM, KMR[0], QF, True), [W(2), sel(0), sel(1)]),
        (dense(SM, KMR[1], QF + 4, False), [W(1), sel(2), sel(3)]),
        (dense(SM, KMR[2], QF + 8, False), [W(0), ex(EX, SX)]),
        (dense(SM, KMR[3], QF + 12, False), [N(1), ex(EX + 1, SX + 1)]),
        (V(0, 6), [oh(0, 0), ex(EX + 2, SX + 2)]),
        (V(0, 7), [oh(0, 1), ex(EX + 3, SX + 3)]),
        (V(1, 1), [oh(1, 0), f"v_cndmask_b32 v{SM}, v{SM}, v{SM + 1}, {hf}", f"v_mul_f32 v{SM}, s{S_C}, v{SM}"]),
        (V(1, 2), [oh(1, 1), ex(SM + 1, SM)]),
        (V(1, 3), [oh(2, 0), f"v_max3_f32 v{SM + 2}, |v{SX}|, |v{SX + 1}|, |v{SX + 2}|",
                   f"v_max3_f32 v{SM + 2}, v{SM + 2}, |v{SX + 3}|, |v{SM}|"]),
        (V(1, 4), [oh(2, 1), f"v_cmp_nge_f32 vcc, {LIMIT:#x}, v{SM + 2}"]),
        (V(1, 5), [oh(3, 0), add2(ACCV, 0)]),
        (V(1, 6), [f"s_cbranch_vccnz {L('big')}" if comm else N(1), L("back") + ":", f"v_cvt_pk_bf16_f32 v{PM}, v{SM + 1}, 0"]),
        (V(1, 7), [oh(3, 1), f"v_lshlrev_b32 v{PM}, v{IDX}, v{PM}", add2(ACCV, 1), cvt(VM0, ACCV, ACCV + 1)]),
        (d16(AL, ONES, 0), [cvt(PX, EX, EX + 1), cvt(PX + 1, EX + 2, EX + 3)]),
        (d16(A0, VM0, 0), [oh(4, 0), add2(ACCV + 4, 0)]),
        (s32(A1, VX + 4), [oh(4, 1), add2(ACCV + 4, 1)]),
        (s32(AL, ONES), [oh(5, 0), cvt(VM1, ACCV + 4, ACCV + 5)]),
        (s32(A0, VX), [N(2), oh(5, 1)]),
        (d16(A1, VM1, vr(A1, 4)), [oh(6, 0)]),
    ]
    f1 = opt.get("f1", 64)
    if w == 0 and f1 == 64:
        plan[64] = (plan[64][0], [notice(0), oh(5, 1)])
    elif w == 0:
        plan[f1][1].insert(0, notice(0))
    for n, (m, fill) in enumerate(plan):
        k(m)
        for f in fill:
            k(f)
        if n == 40 and opt.get("kvwait"):
            k.wait(vm={0: 4, 2: 3}.get(w, 2))
            T(18)
            k.wait(vm=0)
            T(19)
    k(f"v_pk_add_f32 {vr(AL, 2)}, {vr(AL, 2)}, {vr(AL + 2, 2)}")
    k(f"v_rcp_f32 v{AL}, v{AL}\nv_rcp_f32 v{AL + 1}, v{AL + 1}")
    k(f"v_pk_add_f32 {vr(A0, 2)}, {vr(A0, 2)}, {vr(A0 + 2, 2)}")
    k(f"v_pk_mul_f32 {vr(A0, 2)}, {vr(A0, 2)}, {vr(AL, 2)}")
    k(f"v_pk_add_f32 {vr(A1, 2)}, {vr(A1, 2)}, {vr(A1 + 2, 2)}")
    k(f"v_pk_mul_f32 {vr(A1, 2)}, {vr(A1, 2)}, {vr(AL, 2)}")
    k(cvt(A0, A0, A1) + "\n" + cvt(A0 + 1, A0 + 1, A1 + 1))
    T(16)
    hook, k.on_mfma = k.on_mfma, None
    k(d16(ACCO, Z2, 0))
    k(xwr(A0, 0))
    k(d16(ACCO + 4, Z2, 0))
    k(xrd(QF, 64 * w))
    k(d16(ACCO + 8, Z2, 0))
    k(d16(ACCO + 12, Z2, 0))
    k.on_mfma = hook
    k.wait(lgkm=1)
    T(17)
    k("s_barrier")
    k(xrd(QF + 4, 64 * (1 ^ w)))
    T(4)

    cv = lambda x, i: cvt(ACCO + 4 * x + i, ACCO + 4 * x + i, ACCO + 4 * x + 2 + i)
    tg = lambda x: f"v_or_b32 v{ACCO + 4 * x}, 1, v{ACCO + 4 * x}" if p else f"v_and_b32 v{ACCO + 4 * x}, -2, v{ACCO + 4 * x}"
    pst = lambda x: f"buffer_store_dwordx2 {vr(ACCO + 4 * x, 2)}, v{APST}, {WS}, s{S_PST + x} offen {st}"
    plan = [
        [xrd(QF + 8, 64 * (2 ^ w))],
        [xrd(QF + 12, 64 * (3 ^ w))],
        [oh(6, 1)],
        [oh(7, 0), W(4)],
        [oh(7, 1), W(4)],
        [oh(14, 0), W(3)],
        [W(1), N(1), oh(14, 1)],
        [N(2), oh(15, 0)],
        [cv(0, 0), cv(0, 1), tg(0)],
        [N(2), pst(0)],
        [N(2), oh(15, 1)],
        [cv(1, 0), cv(1, 1)],
        [N(2), tg(1)],
        [W(0), N(1), pst(1)],
        [cv(2, 0)],
        [cv(2, 1), tg(2), pst(2)],
    ]
    for n in range(16):
        k(O(n))
        if w == 0 and n == opt.get("pr1", 8):
            probe(0)
        for f in plan[n]:
            k(f)
    k(cv(3, 0) + "\n" + cv(3, 1) + "\n" + tg(3))
    k(pst(3))
    T(5)

    def pld(at=None):
        for i in range(8):
            if i == at:
                k(notice(1))
            k(f"buffer_load_dwordx4 {vr(MF + 4 * i, 4)}, v{AL16}, {WS}, s{S_PLD + (i >> 1)} offen offset:{(i & 1) * 1024} sc1")

    def reduce_all():
        for x in range(4):
            tags = [f"v_bitop3_b32 v{VM0}, {('v%d' % VM0) if r else (1 if p else -2)}, v{r}, v{r + 2} bitop3:{0x80 if p else 0xfe:#x}"
                    for r in (8 * x, 8 * x + 4)]
            k(f"v_smfmac_f32_16x16x64_bf16 {vr(RA, 4)}, {vr(SEL, 4)}, {vr(MF + 8 * x, 8)}, v{SIX}")
            k("\n".join(tags))
        k(f"v_cmp_eq_u32 vcc, {0 if p else -1}, v{VM0}")

    vx = lambda: k(f"ds_read_b128 {vr(VX, 4)}, v{AL16} offset:{moff(0)}\nds_read_b128 {vr(VX + 4, 4)}, v{AL16} offset:{moff(1)}")
    f2 = opt.get("f2", 16)
    if w == 0:
        k(f"ds_read_b128 {vr(SEL, 4)}, v{AL16} offset:{L_SEL}")
        k(f"ds_read_b32 v{SIX}, v{AL16} offset:{L_SIX}")
        clears = [RA, RA + 2] + list(range(ACCQ, ACCQ + 16, 2)) + list(range(ACCV, ACCV + 8, 2))
        nlate = max(f2 - 8, 0)
        prep_next(k, part=0)
        for r in clears[nlate:]:
            k(f"v_mov_b64 {vr(r, 2)}, 0")
        k(f"s_lshl_b32 s{S_MG}, s{S_STEP}, 13\ns_add_u32 s{S_MG}, s{S_MG}, {WS_MG:#x}")
        k.nop(opt.get("d1", 0))
        if opt.get("d1w", 1) is not None:
            k.wait(vm=opt.get("d1w", 1))
        if comm:
            k(f"v_cmp_gt_u32 vcc, s{S_STEP}, v{FD}\ns_cbranch_vccnz {L('late')}", nowait=True)
        k.label(L("fetch"))
        T(14)
        pld(at=f2)
        k("s_barrier")
        if f2 >= 8:
            for r in clears[:nlate]:
                k(f"v_mov_b64 {vr(r, 2)}, 0")
            k(notice(1))
        reduce_all()
        k(f"s_cbranch_vccnz {L('retry')}" if comm else N(1))
        k.label(L("good"))
        k(cvt(FLAG, RA, RA + 1))
        k(f"buffer_store_dword v{FLAG}, v{AMST}, {WS}, s{S_MST} offen {st}")
        T(6)
        k(f"s_cmp_eq_u32 s{S_STEP}, 63\ns_cbranch_scc1 L_team_last")
        vx()
        advance(k, w, 1 - p)
    else:
        k(f"s_cmp_eq_u32 s{S_STEP}, 63\ns_cbranch_scc1 L_exit")
        if w > 1:
            k("s_barrier")
        prep_next(k)
        advance(k, w, 1 - p)
        k.wait(vm=4)
        vx()
        if w == 1:
            k("s_barrier")
            if comm:
                spin(1, 20)
        if w == 2:
            k(f"v_cmp_eq_u32 vcc, 0, v{FLAG}\ns_cbranch_vccnz {L('noflag')}")
            k.label(L("flag"))
            k(f"s_cmp_lt_u32 s{S_STEP}, 61\ns_cselect_b32 s{S_T}, 4, 0\ns_add_u32 s{S_FLAG}, s{S_FLAG}, s{S_T}")
    k("s_barrier")
    T(7)
    shot2(k)
    if stamp:
        stamp_out(k, stamp)
    k.on_mfma = None

    def cold():
        if w == 0:
            k.fresh()
            k.label(L("late"))
            if opt.get("total"):
                k(f"s_add_u32 s{S_OOB}, s{S_OOB}, 0x1000000")
            spin(0, 19)
            for i in range(opt.get("late", 1)):
                probe(0)
                k.wait(vm=0)
            k(f"s_branch {L('fetch')}")

            k.fresh()
            k.label(L("retry"))
            pld()
            spend(k, 17)
            if opt.get("total"):
                k(f"s_add_u32 s{S_OOB}, s{S_OOB}, 1")
            k(f"v_mov_b64 {vr(RA, 2)}, 0\nv_mov_b64 {vr(RA + 2, 2)}, 0")
            reduce_all()
            k(f"s_cbranch_vccnz {L('retry')}")
            k.nop(3)
            k(f"s_branch {L('good')}")
        if w == 2:
            k.fresh()
            k.label(L("noflag"))
            poll_word(k, WS, ZERO, f"s{S_FLAG}", FLAG, 1, 18)
            k(f"s_branch {L('flag')}")

        k.fresh()
        k.label(L("miss"))
        k(f"v_max3_u32 v{PM}, v0, v1, v2\nv_max3_u32 v{VM0}, v3, v4, v5\nv_max3_u32 v{PM}, v{PM}, v6, v7")
        k(f"v_max_u32 v{PM}, v{PM}, v{VM0}\nv_cmp_eq_u32 vcc, -1, v{PM}")
        k.wait(lgkm=0)
        shot2(k)
        k(f"s_cbranch_vccz {L('nan')}")
        if opt.get("total"):
            k(f"s_add_u32 s{S_OOB}, s{S_OOB}, 0x10000")
        spend(k, 16)
        for r in range(ACCQ, ACCQ + 16, 2):
            k(f"v_mov_b64 {vr(r, 2)}, 0")
        k.wait(vm=0)
        k(f"s_branch {L('again')}")
        k.label(L("nan"))
        k.wait(vm=0)
        k(f"s_branch {L('cont')}")

        k.fresh()
        k.label(L("big"))
        MX, M2 = SM + 2, SM + 3
        k(f"v_max3_f32 v{MX}, v{SX}, v{SX + 1}, v{SX + 2}\nv_max3_f32 v{MX}, v{MX}, v{SX + 3}, v{SM}")
        k(f"v_max_f32_dpp v{MX}, v{MX}, v{MX} quad_perm:[2,3,0,1] row_mask:0xf bank_mask:0xf")
        xreduce(k, "v_max_f32", MX, M2)
        for d, r in [(EX + i, SX + i) for i in range(4)] + [(SM + 1, SM)]:
            k(f"v_sub_f32 v{d}, v{r}, v{MX}\nv_exp_f32 v{d}, v{d}")
        k(f"s_branch {L('back')}")
    return cold


def stamp_out(k, stamp):
    k.wait(lgkm=0)
    k(f"s_lshl_b32 s3, s{S_RANK}, 2\ns_add_u32 s3, s3, s{S_WAVE}\ns_lshl_b32 s3, s3, 6\ns_add_u32 s3, s3, s{S_STEP}")
    k(f"s_lshl_b32 s3, s3, 5\ns_add_u32 s3, s3, {WS_STAMP:#x}")
    for j, i in enumerate(stamp):
        k(f"v_writelane_b32 v{VM1}, s{92 + 2 * j}, {j}")
    k(f"v_writelane_b32 v{VM1}, s100, 4\ns_mov_b64 exec, 31")
    k(f"buffer_store_dword v{VM1}, v{FA}, {WS}, s3 offen\ns_mov_b64 exec, -1")


def team(k, opt):
    k.fresh()
    k.label("L_team")
    team_prologue(k, opt)
    modes = (("fast", ""), ("slow", "sc1"))
    if opt.get("force_slow"):
        k(f"s_mov_b32 s{S_FOREIGN}, 1")
    k(f"s_cmp_lg_u32 s{S_FOREIGN}, 0\ns_cbranch_scc1 L_team_slow")
    for tag, st in modes:
        k.label(f"L_team_{tag}")
        for w in range(1, 4):
            k(f"s_cmp_eq_u32 s{S_WAVE}, {w}\ns_cbranch_scc1 L_t{tag}{w}0_again")
        for w in range(4):
            k.raw(".p2align 6")
            k.fresh()
            cold = [team_step(k, w, p, st, tag, opt) for p in range(2)]
            k(f"s_branch L_t{tag}{w}0_again")
            for c in cold:
                c()
    k.fresh()
    k.label("L_team_last")
    k(f"buffer_store_dword v{FLAG}, v{AMST}, {WS}, s{S_MG} offen sc1")
    k("s_branch L_exit")
```

```python
import math, struct
from loader import *


def f2u(x):
    return struct.unpack("<I", struct.pack("<f", x))[0]


def mf(acc, a, b, first):
    return f"v_mfma_f32_16x16x32_bf16 {vr(acc, 4)}, {ur(a, 4)}, {ur(b, 4)}, {'0' if first else vr(acc, 4)}"


def pack(d, a, b):
    return f"v_cvt_pk_bf16_f32 v{d}, v{a}, v{b}"


def ln_phase(k, opt):
    if opt.get("no_ln"):
        return
    IDXS, T = 25, 26
    A, L16, TMP, X, F = 1, 2, 3, 16, 48
    k(f"s_sub_u32 s{IDXS}, s{S_LIST}, 4\ns_lshl_b32 s{IDXS}, s{IDXS}, 5\ns_add_u32 s{IDXS}, s{IDXS}, s{S_RANK}")
    srd(k, SRD_A, P_X, 2048 * 1024)
    srd(k, SRD_W, P_MEM0, 8192)
    lane_addr(k, A, TMP, 0, add=[(0, 4, 1024), (4, 2, 8), (6, 2, 256)])
    lane_addr(k, L16, TMP, 0, add=[(0, 6, 16)])
    k(f"s_lshl_b32 s{T}, s{IDXS}, 14")
    for kk in range(4):
        for hf in range(2):
            k(f"buffer_load_dwordx2 {vr(X + 4 * kk + 2 * hf, 2)}, v{A}, {SA}, s{T} offen offset:{kk * 64 + hf * 32}")
    lane_addr(k, 4, TMP, 0, add=[(0, 1, 1024), (2, 2, 2048), (4, 1, 16), (5, 1, 64), (6, 2, 128)])
    lane_addr(k, 7, TMP, 0, add=[(1, 1, 0x0202)], const=0x0100)
    k("v_add_u32 v3, 0x0404, v7\nv_lshl_or_b32 v7, v3, 16, v7")
    for r in range(4):
        k(f"v_mov_b32 v{8 + r}, -1\nv_mov_b32 v{12 + r}, 0")
    lab = k.newlabel("nomem0")
    k(f"s_cmp_ge_u32 s{IDXS}, 2\ns_cbranch_scc1 {lab}")
    k(f"s_lshl_b32 s{T}, s{IDXS}, 9\nbuffer_load_dwordx4 v[8:11], v4, {SW}, s{T} offen")
    k(f"buffer_load_dwordx4 v[32:35], v4, {SW}, s{T} offen offset:32")
    for r in range(4):
        k(f"v_perm_b32 v{8 + r}, v{32 + r}, v{8 + r}, v7")
    k.label(lab)
    k.wait(vm=0)
    k(f"s_lshl_b32 s{T}, s{IDXS}, 2\ns_add_u32 s{T}, s{T}, s{S_WAVE}\ns_lshl_b32 s{T}, s{T}, 10\ns_add_u32 s{T}, s{T}, {WS_MG:#x}")
    k(f"buffer_store_dwordx4 v[8:11], v{L16}, {WS}, s{T} offen sc1")
    k(f"s_mul_i32 s{T}, s{IDXS}, 192\ns_add_u32 s{T}, s{T}, {WS_FKV:#x}\ns_mov_b64 exec, 0xfff")
    k(f"buffer_store_dwordx4 v[12:15], v{L16}, {WS}, s{T} offen sc1\ns_mov_b64 exec, -1")
    for i in range(16):
        k(f"v_lshlrev_b32 v{F + 2 * i}, 16, v{X + i}\nv_and_b32 v{F + 2 * i + 1}, 0xffff0000, v{X + i}")
    lane_addr(k, 5, TMP, 0, add=[(0, 4, 16), (6, 2, 4)], const=64)
    lane_addr(k, 6, TMP, 0, add=[(0, 4, 16)], const=64)

    def row_total(off):
        xreduce(k, "v_add_f32", 32, 33)
        k(f"ds_write_b32 v5, v32 offset:{off}")
        k.wait(lgkm=0)
        k(f"s_barrier\nds_read_b128 v[36:39], v6 offset:{off}")
        k("v_add_f32 v36, v36, v37\nv_add_f32 v38, v38, v39\nv_add_f32 v32, v36, v38")
        k(f"v_mul_f32 v32, {f2u(1 / 512):#x}, v32")

    def round_bf16(r):
        k(f"v_cvt_pk_bf16_f32 v{r}, v{r}, v{r}\nv_and_b32 v{r}, 0xffff0000, v{r}")

    k(f"v_add_f32 v32, v{F}, v{F + 1}\nv_add_f32 v33, v{F + 2}, v{F + 3}")
    for i in range(4, 32):
        k(f"v_add_f32 v{32 + (i & 1)}, v{32 + (i & 1)}, v{F + i}")
    k("v_add_f32 v32, v32, v33")
    row_total(0)
    k("v_mov_b32 v34, v32\nv_mov_b32 v32, 0\nv_mov_b32 v33, 0")
    for i in range(32):
        k(f"v_sub_f32 v{40 + (i & 1)}, v{F + i}, v34\nv_fmac_f32 v{32 + (i & 1)}, v{40 + (i & 1)}, v{40 + (i & 1)}")
    k("v_add_f32 v32, v32, v33")
    row_total(256)
    round_bf16(34)
    round_bf16(32)
    k(f"v_add_f32 v32, {f2u(1e-5):#x}, v32")
    round_bf16(32)
    k("v_sqrt_f32 v32, v32")
    round_bf16(32)
    k("v_rcp_f32 v32, v32")
    for kk in range(4):
        for r in range(4):
            i, j = F + 8 * kk + r, F + 8 * kk + 4 + r
            k(f"v_sub_f32 v{i}, v{i}, v34\nv_sub_f32 v{j}, v{j}, v34\n" + pack(40, i, j))
            k(f"v_lshlrev_b32 v{i}, 16, v40\nv_and_b32 v{j}, 0xffff0000, v40")
            k(f"v_mul_f32 v{i}, v{i}, v32\nv_mul_f32 v{j}, v{j}, v32\n" + pack(X + 4 * kk + r, i, j))
    k(f"s_lshr_b32 s{T}, s{IDXS}, 1\ns_lshl_b32 s{T}, s{T}, 15\ns_and_b32 s3, s{IDXS}, 1\ns_lshl_b32 s3, s3, 10\ns_add_u32 s{T}, s{T}, s3")
    k(f"s_lshl_b32 s3, s{S_WAVE}, 13\ns_add_u32 s{T}, s{T}, s3\ns_add_u32 s{T}, s{T}, {WS_XN:#x}")
    for kk in range(4):
        if kk == 2:
            k(f"s_add_u32 s{T}, s{T}, 4096")
        k(f"buffer_store_dwordx4 {vr(X + 4 * kk, 4)}, v{L16}, {WS}, s{T} offen offset:{(kk & 1) * 2048} sc1")
    lab = k.newlabel("lndone")
    k.wait(vm=0, lgkm=0)
    k(f"s_barrier\ns_cmp_lg_u32 s{S_WAVE}, 0\ns_cbranch_scc1 {lab}")
    k(f"v_mov_b32 v4, 1\nv_mov_b32 v5, 0\ns_mov_b64 exec, 1")
    k(f"buffer_atomic_add v4, v5, {DBG}, 0 offen offset:{DBG_LN} sc1\ns_mov_b64 exec, -1")
    k.label(lab)


def xn_dma(k, s_seg, s_buf, s_t, L16):
    k(f"s_lshl_b32 s{s_t}, s{s_seg}, 15\ns_lshl_b32 s3, s{S_WAVE}, 13\ns_add_u32 s{s_t}, s{s_t}, s3")
    k(f"s_add_u32 s{s_t}, s{s_t}, {WS_XN:#x}\ns_add_u32 s3, s3, s{s_buf}")
    for half in range(2):
        k(f"s_add_u32 m0, s3, {half * 4096}")
        if half:
            k(f"s_add_u32 s{s_t}, s{s_t}, 4096")
        for i in range(4):
            k(f"buffer_load_dwordx4 v{L16}, {WS}, s{s_t} offen offset:{i * 1024} sc1 lds")


def token_gemm(k, AX, XF, per_kk):
    rd = lambda kk, tau: f"ds_read_b128 {vr(XF + 8 * (kk & 1) + 4 * tau, 4)}, v{AX} offset:{kk * 2048 + tau * 1024}"
    k(rd(0, 0) + "\n" + rd(0, 1))
    for kk in range(16):
        ms = per_kk(kk, lambda tau: XF + 8 * (kk & 1) + 4 * tau)
        for i, m in enumerate(ms):
            k(m)
            if kk < 15 and i < 2:
                k(rd(kk + 1, i))


def proj_role(k, opt):
    L_XN, L_ST, L_MEM, L_XB = 0, 65536, 65536 + 3 * 24576, 65536 + 3 * 24576 + 8192
    XROW = 288
    S_SEG, S_FIN, S_BUF, S_SP, S_SF, S_T, S_C, S_NX = 25, 26, 27, 28, 29, 34, 35, 36
    S_MASK = 40
    L16, ZERO, IDX, AMW, AMR, AXW, AXR, A0, A1 = 116, 117, 119, 120, 121, 122, 123, 124, 125
    VM0, VM1 = 118, 126
    res = iter(range(128, 512, 8))
    W = {m: {(u, t): next(res) for u in range(2) for t in range(8)} for m in "kvq"}
    wf = lambda m, u, kk: W[m][(u, kk >> 1)] + 4 * (kk & 1)

    k.fresh()
    k.label("L_proj")
    VS, VR_, VT = 2, 4, 16
    k(f"s_lshl_b32 s30, s{S_WAVE}, 20\ns_lshl_b32 s3, s{S_RANK}, 8\ns_add_u32 s30, s30, s3\ns_add_u32 s31, s30, 0x80000")
    k(f"s_lshl_b32 s33, s{S_WAVE}, 12")
    qkv_setup(k, 0, VS, VR_, VT, rotate=False)
    units = []
    for m, ptr in (("k", P_WK), ("v", P_WV), ("q", P_WQ)):
        units += qkv_units(k, ptr, 30, VS, VR_, lambda u, t, m=m: W[m][(u, t)])
    run_units(k, units, [0, 16384, 32768], 33, S_T, VT, mod=opt.get("pmod", ""))

    lane_addr(k, L16, VT, 0, add=[(0, 6, 16)])
    lane_addr(k, AMW, VT, 0, add=[(0, 6, 16), (6, 2, 2048)], const=L_MEM)
    lane_addr(k, AMR, VT, 0, add=[(0, 6, 16)], const=L_MEM)
    lane_addr(k, AXW, VT, 0, add=[(0, 4, 4), (4, 2, 2 * XROW), (6, 2, 64)], const=L_XB)
    lane_addr(k, AXR, VT, 0, add=[(0, 1, XROW), (2, 2, 2 * XROW), (4, 2, 16)], const=L_XB)
    lane_addr(k, IDX, VT, 0, add=[(1, 1, 0xaaaa)], const=0x4444)
    k(f"v_mov_b32 v{ZERO}, 0\nv_mov_b32 v127, 0\ns_mov_b32 s{S_C}, {opt['c_bits']:#x}")
    lane_addr(k, 20, VT, 0, add=[(4, 2, 4)])
    lane_addr(k, 21, VT, 0, add=[(0, 4, 1)])
    for r in range(4):
        k(f"v_add_u32 v22, {r}, v20\nv_cmp_gt_u32 s[{S_MASK + 2 * r}:{S_MASK + 2 * r + 1}], v22, v21")
    k(f"s_sub_u32 s{S_SEG}, s{S_LIST}, 1\ns_mov_b32 s{S_FIN}, s{S_SEG}\ns_mov_b32 s{S_BUF}, 0")
    k(f"s_mov_b32 s{S_SP}, {L_ST}\ns_mov_b32 s{S_SF}, {L_ST}")
    poll_word(k, DBG, ZERO, 0, 20, N_LN, 32, imm=DBG_LN, sleep=2)
    xn_dma(k, S_SEG, S_BUF, S_T, L16)

    def next_slot(s):
        k(f"s_add_u32 s{s}, s{s}, 24576\ns_cmp_eq_u32 s{s}, {L_ST + 3 * 24576}\ns_cselect_b32 s{s}, {L_ST}, s{s}")

    k.label("L_proj_loop", vm=0, lgkm=0)
    k(f"s_cmp_ge_u32 s{S_SEG}, 64\ns_cbranch_scc1 L_proj_fin")
    k.wait(vm=0)
    k("s_barrier")
    k(f"v_add_u32 v{A0}, s{S_BUF}, v{L16}")
    k(f"s_xor_b32 s{S_BUF}, s{S_BUF}, 32768\ns_add_u32 s{S_NX}, s{S_SEG}, 3\ns_min_u32 s{S_NX}, s{S_NX}, 63")
    xn_dma(k, S_NX, S_BUF, S_T, L16)
    AQ, AK, AV, XF = 0, 16, 32, 48

    def per_kk(kk, xf):
        ms = []
        for tau in range(2):
            for u in range(2):
                ms.append(mf(AK + 8 * tau + 4 * u, wf("k", u, kk), xf(tau), kk == 0))
                ms.append(mf(AV + 8 * u + 4 * tau, xf(tau), wf("v", u, kk), kk == 0))
                ms.append(mf(AQ + 8 * tau + 4 * u, wf("q", u, kk), xf(tau), kk == 0))
        return ms
    token_gemm(k, A0, XF, per_kk)
    k(f"s_lshl_b32 s3, s{S_WAVE}, 10\ns_add_u32 s3, s3, s{S_SP}\nv_add_u32 v{A0}, s3, v{L16}")
    k(f"s_lshl_b32 s3, s{S_WAVE}, 11\ns_add_u32 s3, s3, s{S_SP}\nv_add_u32 v{A1}, s3, v{L16}")
    k(f"s_lshl_b32 s{S_T}, s{S_SEG}, 5\ns_add_u32 s{S_T}, s{S_T}, s{S_RANK}\ns_lshl_b32 s{S_T}, s{S_T}, 14")
    k(f"s_add_u32 s{S_T}, s{S_T}, {WS_KV:#x}\ns_lshl_b32 s3, s{S_WAVE}, 10\ns_add_u32 s37, s{S_T}, s3\ns_add_u32 s38, s37, 8192")
    k(f"s_add_u32 s48, s37, 4096\ns_add_u32 s49, s38, 4096")
    for tau in range(2):
        for r in range(4):
            k(pack(72 + 4 * tau + r, AK + 8 * tau + r, AK + 8 * tau + 4 + r))
        k(f"ds_write_b128 v{A0}, {vr(72 + 4 * tau, 4)} offset:{8192 + tau * 4096}")
        for r in range(8):
            k(f"v_mul_f32 v{AK + 8 * tau + r}, s{S_C}, v{AK + 8 * tau + r}")
        for r in range(4):
            k(pack(88 + 4 * tau + r, AK + 8 * tau + r, AK + 8 * tau + 4 + r))
        k(f"buffer_store_dwordx4 {vr(88 + 4 * tau, 4)}, v{L16}, {WS}, s{37 + tau} offen sc1")
    for u in range(2):
        for a in range(2):
            for tau in range(2):
                k(pack(80 + 4 * u + 2 * a + tau, AV + 8 * u + 4 * tau + 2 * a, AV + 8 * u + 4 * tau + 2 * a + 1))
        k(f"buffer_store_dwordx4 {vr(80 + 4 * u, 4)}, v{L16}, {WS}, s{48 + u} offen sc1")
        k(f"ds_write_b128 v{A1}, {vr(80 + 4 * u, 4)} offset:{16384 + u * 1024}")
    for tau in range(2):
        for r in range(4):
            k(pack(64 + 4 * tau + r, AQ + 8 * tau + r, AQ + 8 * tau + 4 + r))
        k(f"ds_write_b128 v{A0}, {vr(64 + 4 * tau, 4)} offset:{tau * 4096}")
    k(f"s_lshl_b32 s{S_T}, s{S_RANK}, 6\ns_add_u32 s{S_T}, s{S_T}, s{S_SEG}\ns_lshl_b32 s{S_T}, s{S_T}, 2\ns_add_u32 s{S_T}, s{S_T}, {WS_FKV:#x}")
    raise_flag(k, f"s{S_T}", ZERO, 20)
    next_slot(S_SP)
    k(f"s_add_u32 s{S_SEG}, s{S_SEG}, 3\ns_sub_u32 s3, s{S_SEG}, s{S_FIN}\ns_cmp_lt_u32 s3, 9\ns_cbranch_scc1 L_proj_loop")

    k.label("L_proj_fin", vm=0, lgkm=0)
    QF, KF, KM, S00, S10, S11, SM0 = 64, 0, 48, 96, 100, 104, 108
    k(f"v_add_u32 v{A0}, s{S_SF}, v{L16}")
    k(f"s_lshl_b32 s3, s{S_WAVE}, 11\nv_add_u32 v{A1}, s3, v{A0}")
    for ks in range(4):
        for tau in range(2):
            k(f"ds_read_b128 {vr(QF + 16 * tau + 4 * ks, 4)}, v{A0} offset:{tau * 4096 + ks * 1024}")
            k(f"ds_read_b128 {vr(KF + 16 * tau + 4 * ks, 4)}, v{A0} offset:{8192 + tau * 4096 + ks * 1024}")
    for ks in range(4):
        k(mf(S00, KF + 4 * ks, QF + 4 * ks, ks == 0))
        k(mf(S10, KF + 4 * ks, QF + 16 + 4 * ks, ks == 0))
        k(mf(S11, KF + 16 + 4 * ks, QF + 16 + 4 * ks, ks == 0))
    AKM, AVM = 32, 40
    for r in range(AKM, AKM + 16, 2):
        k(f"v_mov_b64 {vr(r, 2)}, 0")
    k("v_mov_b32 v48, 0xff800000")
    for r in range(4):
        for S in (S00, S11):
            k(f"v_cndmask_b32 v{S + r}, v{S + r}, v48, s[{S_MASK + 2 * r}:{S_MASK + 2 * r + 1}]")
    k(f"s_lshl_b32 s{S_T}, s{S_FIN}, 13\ns_lshl_b32 s3, s{S_WAVE}, 11\ns_add_u32 s{S_T}, s{S_T}, s3\ns_add_u32 s{S_T}, s{S_T}, {WS_MG:#x}")
    k.label("L_proj_poll")
    k(f"buffer_load_dwordx4 v[0:3], v{L16}, {WS}, s{S_T} offen sc1")
    k(f"buffer_load_dwordx4 v[4:7], v{L16}, {WS}, s{S_T} offen offset:1024 sc1")
    spend(k, 33)
    k.wait(vm=0)
    k("v_max3_u32 v8, v0, v1, v2\nv_max3_u32 v9, v3, v4, v5\nv_max3_u32 v8, v8, v6, v7\nv_max_u32 v8, v8, v9")
    k("v_cmp_eq_u32 vcc, -1, v8\ns_cbranch_vccz L_proj_got\ns_sleep 1\ns_branch L_proj_poll")
    k.label("L_proj_got")
    k(f"ds_write_b128 v{AMW}, v[0:3]\nds_write_b128 v{AMW}, v[4:7] offset:1024")
    k.wait(lgkm=0)
    k("s_barrier")
    for t in range(8):
        k(f"ds_read_b128 {vr(4 * t, 4)}, v{AMR} offset:{t * 1024}")
    smf = lambda acc, m, u, t: f"v_smfmac_f32_16x16x64_bf16 {vr(acc + 4 * u, 4)}, {vr(4 * t, 4)}, {ur(W[m][(u, t)], 8)}, v{IDX}"
    for t in range(8):
        for u in range(2):
            k(smf(AKM, "k", u, t))
    post = ["s_nop 2", "s_nop 2"]
    post += [f"v_add_f32 v{AKM + 4 * u + i}, v{AKM + 4 * u + i}, v{AKM + 4 * u + 2 + i}" for u in range(2) for i in range(2)]
    post += [pack(AKM + i, AKM + i, AKM + 4 + i) for i in range(2)]
    post += [f"ds_write2_b32 v{AXW}, v{AKM}, v{AKM + 1} offset0:0 offset1:{XROW // 4}", "", "", "", "s_waitcnt lgkmcnt(0)\ns_barrier"]
    post += [f"ds_read_b128 {vr(KM + 4 * ks, 4)}, v{AXR} offset:{64 * ks}" for ks in range(3)]
    for n in range(16):
        k(smf(AVM, "v", n & 1, n >> 1))
        k(post[n])
    k(f"ds_read_b128 {vr(KM + 12, 4)}, v{AXR} offset:192")
    VF, ONE = 0, 8
    k(f"ds_read_b128 {vr(VF, 4)}, v{A1} offset:16384\nds_read_b128 {vr(VF + 4, 4)}, v{A1} offset:17408")
    for ks in range(4):
        for th in range(2):
            k(mf(SM0 + 4 * th, KM + 4 * ks, QF + 16 * th + 4 * ks, ks == 0))
    for u in range(2):
        for i in range(2):
            k(f"v_add_f32 v{AVM + 4 * u + i}, v{AVM + 4 * u + i}, v{AVM + 4 * u + 2 + i}")
        k(pack((VM0, VM1)[u], AVM + 4 * u, AVM + 4 * u + 1))
    for r in range(4):
        k(f"v_mov_b32 v{ONE + r}, 0x3f803f80")
    vals = [[S00 + r for r in range(4)] + [SM0, SM0 + 1], [S10 + r for r in range(8)] + [SM0 + 4, SM0 + 5]]
    MX = [12, 14]
    for th in range(2):
        v = vals[th]
        k(f"v_max_f32 v{MX[th]}, v{v[0]}, v{v[1]}")
        for i in range(2, len(v), 2):
            k(f"v_max3_f32 v{MX[th]}, v{MX[th]}, v{v[i]}, v{v[i + 1]}")
    for sw in ("v_permlane16_swap_b32", "v_permlane32_swap_b32"):
        for th in range(2):
            k(f"v_mov_b32 v{MX[th] + 1}, v{MX[th]}")
        for th in range(2):
            k(f"{sw} v{MX[th]}, v{MX[th] + 1}")
        for th in range(2):
            k(f"v_max_f32 v{MX[th]}, v{MX[th]}, v{MX[th] + 1}")
    for th in range(2):
        k(f"v_mul_f32 v{MX[th]}, s{S_C}, v{MX[th]}")
    PX, PM = [16, 20], [24, 26]
    for th in range(2):
        for r in vals[th]:
            k(f"v_fma_f32 v{r}, v{r}, s{S_C}, -v{MX[th]}")
        for r in vals[th]:
            k(f"v_exp_f32 v{r}, v{r}")
        k(f"v_mov_b32 v{PM[th] + 1}, 0")
        if th == 0:
            k(f"v_mov_b32 v{PX[0] + 1}, 0\nv_mov_b32 v{PX[0] + 3}, 0")
            k(pack(PX[0], S00, S00 + 1) + "\n" + pack(PX[0] + 2, S00 + 2, S00 + 3))
        else:
            for a in range(2):
                for tau in range(2):
                    k(pack(PX[1] + 2 * a + tau, S10 + 4 * tau + 2 * a, S10 + 4 * tau + 2 * a + 1))
        k(pack(PM[th], SM0 + 4 * th, SM0 + 4 * th + 1))
        AO = 48 + 12 * th
        for j, ax in enumerate((ONE, VF, VF + 4)):
            k(mf(AO + 4 * j, ax, PX[th], True))
            k.nop(2)
        for j, am in enumerate((ONE, VM0, VM1)):
            k(f"v_mfma_f32_16x16x16_bf16 {vr(AO + 4 * j, 4)}, {vr(am, 2)}, {vr(PM[th], 2)}, {vr(AO + 4 * j, 4)}")
    k(f"s_lshl_b32 s{S_T}, s{S_FIN}, 18\ns_lshl_b32 s3, s{S_RANK}, 12\ns_add_u32 s{S_T}, s{S_T}, s3")
    k(f"s_lshl_b32 s3, s{S_WAVE}, 10\ns_add_u32 s{S_T}, s{S_T}, s3\ns_add_u32 s{S_T}, s{S_T}, {WS_O:#x}")
    for th in range(2):
        AO = 48 + 12 * th
        k(f"v_rcp_f32 v{AO}, v{AO}")
        for r in range(8):
            k(f"v_mul_f32 v{AO + 4 + r}, v{AO + 4 + r}, v{AO}")
        for r in range(4):
            k(pack(AO + 4 + r, AO + 4 + r, AO + 8 + r))
        k(f"buffer_store_dwordx4 {vr(AO + 4, 4)}, v{L16}, {WS}, s{S_T} offen sc1")
        k(f"s_add_u32 s{S_T}, s{S_T}, 0x20000")
    k(f"s_lshl_b32 s{S_T}, s{S_FIN}, 5\ns_add_u32 s{S_T}, s{S_T}, s{S_RANK}\ns_lshl_b32 s{S_T}, s{S_T}, 2\ns_add_u32 s{S_T}, s{S_T}, {WS_FO:#x}")
    raise_flag(k, f"s{S_T}", ZERO, 20)
    next_slot(S_SF)
    k(f"s_add_u32 s{S_FIN}, s{S_FIN}, 3\ns_cmp_lt_u32 s{S_FIN}, 64\ns_cbranch_scc1 L_proj_loop\ns_branch L_exit")


def ffn_role(k, opt):
    S_SEG, S_BUF, S_CU, S_T, S_NX, S_K1, S_K2 = 25, 27, 28, 34, 36, 37, 38
    L16, ZERO, A0 = 116, 117, 124
    W = {m: {(u, t): 256 + 128 * i + 64 * u + 8 * t for u in range(2) for t in range(8)} for i, m in enumerate("gu")}
    wf = lambda m, u, kk: W[m][(u, kk >> 1)] + 4 * (kk & 1)
    k.fresh()
    k.label("L_ffn")
    ln_phase(k, opt)
    if "ffn" in opt.get("ln_only", ()):
        k("s_branch L_exit")
    k(f"s_cmp_ge_u32 s{S_RANK}, 22\ns_cbranch_scc1 L_exit")
    k(f"s_cmp_ge_u32 s{S_RANK}, 11\ns_cselect_b32 s{S_SEG}, 1, 0\ns_mul_i32 s3, s{S_SEG}, 11\ns_sub_u32 s{S_CU}, s{S_RANK}, s3")
    VS, VR_, VT = 2, 4, 16
    k(f"s_mul_i32 s30, s{S_WAVE}, {128 * 2752}\ns_lshl_b32 s3, s{S_CU}, 8\ns_add_u32 s30, s30, s3\ns_add_u32 s31, s30, {64 * 2752}")
    k(f"s_lshl_b32 s33, s{S_WAVE}, 12")
    qkv_setup(k, 0, VS, VR_, VT, rotate=False, stride=2752)
    units = []
    for m, ptr in (("g", P_WG), ("u", P_WU)):
        units += qkv_units(k, ptr, 30, VS, VR_, lambda u, t, m=m: W[m][(u, t)], stride=2752)
    run_units(k, units, [0, 16384, 32768], 33, S_T, VT, mod="")
    lane_addr(k, L16, VT, 0, add=[(0, 6, 16)])
    k(f"v_mov_b32 v{ZERO}, 0\ns_mov_b32 s{S_BUF}, 0")
    k1 = -2 * math.sqrt(2 / math.pi) * math.log2(math.e)
    k(f"s_mov_b32 s{S_K2}, {f2u(k1 * 0.044715):#x}\nv_mov_b32 v118, {f2u(k1):#x}")
    poll_word(k, DBG, ZERO, 0, 20, N_LN, 48, imm=DBG_LN, sleep=2)
    xn_dma(k, S_SEG, S_BUF, S_T, L16)
    k.label("L_ffn_loop", vm=0, lgkm=0)
    k.wait(vm=0)
    k("s_barrier")
    k(f"v_add_u32 v{A0}, s{S_BUF}, v{L16}")
    k(f"s_xor_b32 s{S_BUF}, s{S_BUF}, 32768\ns_add_u32 s{S_NX}, s{S_SEG}, 2\ns_min_u32 s{S_NX}, s{S_NX}, 63")
    xn_dma(k, S_NX, S_BUF, S_T, L16)
    AG, AU, XF, T0 = 0, 16, 48, 64

    def per_kk(kk, xf):
        return [mf(a + 8 * tau + 4 * u, wf(m, u, kk), xf(tau), kk == 0)
                for tau in range(2) for u in range(2) for m, a in (("g", AG), ("u", AU))]
    token_gemm(k, A0, XF, per_kk)
    k(f"s_mul_i32 s{S_T}, s{S_SEG}, {88 * 1024}\ns_lshl_b32 s3, s{S_CU}, 2\ns_add_u32 s3, s3, s{S_WAVE}\ns_lshl_b32 s3, s3, 10")
    k(f"s_add_u32 s{S_T}, s{S_T}, s3\ns_add_u32 s{S_T}, s{S_T}, {WS_H:#x}")
    for tau in range(2):
        rs = range(8 * tau, 8 * tau + 8)
        steps = (lambda r: f"v_mul_f32 v{T0 + r}, v{AG + r}, v{AG + r}",
                 lambda r: f"v_fma_f32 v{T0 + r}, v{T0 + r}, s{S_K2}, v118",
                 lambda r: f"v_mul_f32 v{T0 + r}, v{T0 + r}, v{AG + r}",
                 lambda r: f"v_exp_f32 v{T0 + r}, v{T0 + r}",
                 lambda r: f"v_add_f32 v{T0 + r}, 1.0, v{T0 + r}",
                 lambda r: f"v_rcp_f32 v{T0 + r}, v{T0 + r}",
                 lambda r: f"v_mul_f32 v{T0 + r}, v{T0 + r}, v{AG + r}",
                 lambda r: f"v_mul_f32 v{T0 + r}, v{T0 + r}, v{AU + r}")
        for st in steps:
            for r in rs:
                k(st(r))
        for r in range(4):
            k(pack(T0 + 8 * tau + r, T0 + 8 * tau + r, T0 + 8 * tau + 4 + r))
        k(f"buffer_store_dwordx4 {vr(T0 + 8 * tau, 4)}, v{L16}, {WS}, s{S_T} offen sc1")
        k(f"s_add_u32 s{S_T}, s{S_T}, {44 * 1024}")
    k(f"s_lshl_b32 s{S_T}, s{S_SEG}, 5\ns_add_u32 s{S_T}, s{S_T}, s{S_CU}\ns_lshl_b32 s{S_T}, s{S_T}, 2\ns_add_u32 s{S_T}, s{S_T}, {WS_FH:#x}")
    raise_flag(k, f"s{S_T}", ZERO, 20)
    k(f"s_add_u32 s{S_SEG}, s{S_SEG}, 2\ns_cmp_lt_u32 s{S_SEG}, 64\ns_cbranch_scc1 L_ffn_loop\ns_branch L_exit")


def col_role(k, opt):
    S_SEG, S_TH, S_SL, S_T, S_B, S_U = 25, 27, 28, 34, 35, 36
    S_OFF = 40
    AS, AB, G, X = 128, 136, 144, 152
    L16, ZERO, AFH, AFO, AOUT, ARW, TMP = 156, 157, 158, 159, 160, 161, 162
    WD = 168
    k.fresh()
    k.label("L_col")
    ln_phase(k, opt)
    if "col" in opt.get("ln_only", ()):
        k("s_branch L_exit")
    k(f"s_and_b32 s{S_TH}, s{S_RANK}, 1\ns_lshr_b32 s{S_SL}, s{S_RANK}, 1\ns_lshl_b32 s33, s{S_WAVE}, 12")
    VS, VR_, VT = 2, 4, 16
    lane_addr(k, VS, VT, 0, add=[(0, 2, 16), (2, 1, 16 * 1024), (3, 1, 1024), (4, 2, 4096)])
    lane_addr(k, VR_, VT, 0, add=[(0, 6, 16), (6, 2, 4096)])
    units = []
    for m in range(6):
        nn = [n0 for n0 in range(2) if 2 * m + n0 < 11]
        units.append(dict(dma=[(VS, S_B, (32 * (2 * m + n0) + 2 * y) * 1024) for n0 in nn for y in range(2)],
                          reads=[(VR_, (2 * n0 + y) * 1024 + 8 * u, WD + 8 * (2 * m + n0) + 4 * u + 2 * y)
                                 for n0 in nn for y in range(2) for u in range(2)]))

    def pre_d():
        srd(k, SRD_W, P_WD, 1376 * 1024)
        k(f"s_mul_i32 s{S_B}, s{S_WAVE}, {11 * 32 * 1024}\ns_lshl_b32 s3, s{S_SL}, 6\ns_add_u32 s{S_B}, s{S_B}, s3")
    units[0]["pre"] = pre_d
    for m in range(16):
        def pre_o(m=m):
            if m == 0:
                srd(k, SRD_W, P_WO, 4096 * 1024)
                k(f"s_lshl_b32 s{S_B}, s{S_WAVE}, 20\ns_lshl_b32 s3, s{S_SL}, 6\ns_add_u32 s{S_B}, s{S_B}, s3")
            k(f"s_xor_b32 s{S_U}, s{S_SL}, {m}\ns_lshl_b32 s{S_U}, s{S_U}, 16\ns_add_u32 s{S_U}, s{S_U}, s{S_B}")
        units.append(dict(pre=pre_o, dma=[(VS, S_U, (32 * n0 + 2 * y) * 1024) for n0 in range(2) for y in range(2)],
                          reads=[(VR_, (2 * n0 + y) * 1024 + 8 * u, 256 + 8 * (2 * m + n0) + 4 * u + 2 * y)
                                 for n0 in range(2) for y in range(2) for u in range(2)]))
    run_units(k, units, [0, 16384, 32768], 33, S_T, VT, mod="")

    lane_addr(k, L16, VT, 0, add=[(0, 6, 16)])
    lane_addr(k, ARW, VT, 0, add=[(0, 6, 16), (6, 2, 2048)])
    lane_addr(k, AFO, VT, 0, add=[(0, 3, 4), (6, 2, 32)])
    lane_addr(k, AFH, VT, 0, add=[(0, 4, 4)])
    lane_addr(k, AOUT, VT, 0, add=[(0, 4, 1024), (4, 2, 16)])
    k(f"v_min_u32 v{AFH}, 40, v{AFH}\nv_mov_b32 v{ZERO}, 0")
    k(f"s_lshl_b32 s3, s{S_TH}, 14\ns_lshl_b32 s{S_T}, s{S_SL}, 6\ns_add_u32 s3, s3, s{S_T}\nv_add_u32 v{AOUT}, s3, v{AOUT}")
    srd(k, SRD_A, P_X, 2048 * 1024)
    srd(k, SRD_W, P_OUT, 2048 * 1024)
    k(f"s_sub_u32 s{S_SEG}, s{S_LIST}, 4")
    k(f"s_lshl_b32 s{S_B}, s{S_TH}, 17\ns_lshl_b32 s3, s{S_WAVE}, 15\ns_add_u32 s{S_B}, s{S_B}, s3\ns_lshl_b32 s3, s{S_SEG}, 18")
    k(f"s_add_u32 s{S_B}, s{S_B}, s3\ns_add_u32 s{S_B}, s{S_B}, {WS_O:#x}")
    for m in range(16):
        k(f"s_xor_b32 s3, s{S_SL}, {m}\ns_lshl_b32 s3, s3, 11\ns_add_u32 s{S_OFF + m}, s{S_B}, s3")
    poll_word(k, DBG, ZERO, 0, TMP, N_LN, 64, imm=DBG_LN, sleep=2)

    def gather(acc, off, lab):
        k(f"ds_write_b128 v{ARW}, {vr(acc, 4)} offset:{off}\nds_write_b128 v{ARW}, {vr(acc + 4, 4)} offset:{off + 1024}")
        k.wait(lgkm=0)
        k(f"s_barrier\ns_cmp_lg_u32 s{S_WAVE}, 0\ns_cbranch_scc1 {lab}")
        for i in range(6):
            k(f"ds_read_b128 {vr(4 * i, 4)}, v{L16} offset:{off + 2048 + 1024 * i}")
        for w in range(3):
            for r in range(0, 8, 2):
                k(f"v_pk_add_f32 {vr(acc + r, 2)}, {vr(acc + r, 2)}, {vr(8 * w + r, 2)}")

    k.label("L_col_loop", vm=0, lgkm=0)
    k(f"s_lshl_b32 s{S_U}, s{S_SEG}, 7\ns_add_u32 s{S_T}, s{S_U}, {WS_FH:#x}")
    poll_word(k, WS, AFH, f"s{S_T}", TMP, 1, 65, sleep=2)
    k(f"s_lshl_b32 s{S_T}, s{S_SEG}, 1\ns_add_u32 s{S_T}, s{S_T}, s{S_TH}\ns_lshl_b32 s{S_T}, s{S_T}, 2\ns_add_u32 s{S_T}, s{S_T}, s{S_WAVE}")
    k(f"s_mul_i32 s{S_T}, s{S_T}, {11 * 1024}\ns_add_u32 s{S_T}, s{S_T}, {WS_H:#x}")
    for n in range(11):
        if n and n % 4 == 0:
            k(f"s_add_u32 s{S_T}, s{S_T}, 4096")
        k(f"buffer_load_dwordx4 {vr(4 * n, 4)}, v{L16}, {WS}, s{S_T} offen offset:{(n % 4) * 1024} sc1")
    k(f"s_lshl_b32 s{S_T}, s{S_SEG}, 15\nbuffer_load_dwordx4 {vr(X, 4)}, v{AOUT}, {SA}, s{S_T} offen")
    for n in range(11):
        for u in range(2):
            k(mf(AB + 4 * u, WD + 8 * n + 4 * u, 4 * n, n == 0))
    gather(AB, 0, "L_col_g")
    for r in range(8):
        k(f"v_mul_f32 v{G + r}, {f2u(-math.log2(math.e)):#x}, v{AB + r}")
    for op in ("v_exp_f32 v{0}, v{0}", "v_add_f32 v{0}, 1.0, v{0}", "v_rcp_f32 v{0}, v{0}"):
        for r in range(8):
            k(op.format(G + r))
    for r in range(8):
        k(f"v_mul_f32 v{G + r}, v{G + r}, v{AB + r}")
    k.label("L_col_g")
    k(f"s_add_u32 s{S_T}, s{S_U}, {WS_FO:#x}")
    poll_word(k, WS, AFO, f"s{S_T}", TMP, 1, 66, sleep=1)
    for n in range(32):
        k(f"buffer_load_dwordx4 {vr(4 * n, 4)}, v{L16}, {WS}, s{S_OFF + (n >> 1)} offen offset:{(n & 1) * 1024} sc1")
    for m in range(16):
        k(f"s_add_u32 s{S_OFF + m}, s{S_OFF + m}, {3 << 18:#x}")
    for n in range(32):
        for u in range(2):
            k(mf(AS + 4 * u, 256 + 8 * n + 4 * u, 4 * n, n == 0))
    gather(AS, 8192, "L_col_next")
    for i in range(4):
        k(f"v_lshlrev_b32 v{2 * i}, 16, v{X + i}\nv_and_b32 v{2 * i + 1}, 0xffff0000, v{X + i}")
    for r in range(8):
        k(f"v_fmac_f32 v{r}, v{AS + r}, v{G + r}")
    for i in range(4):
        k(pack(AS + i, 2 * i, 2 * i + 1))
    k(f"s_lshl_b32 s{S_T}, s{S_SEG}, 15\nbuffer_store_dwordx4 {vr(AS, 4)}, v{AOUT}, {SW}, s{S_T} offen")
    k.label("L_col_next")
    k(f"s_add_u32 s{S_SEG}, s{S_SEG}, 3\ns_cmp_lt_u32 s{S_SEG}, 64\ns_cbranch_scc1 L_col_loop\ns_branch L_exit")


def workers(k, opt):
    k.on_mfma = None
    if "proj" in opt["roles"]:
        proj_role(k, opt)
    if "ffn" in opt["roles"]:
        ffn_role(k, opt)
    if "col" in opt["roles"]:
        col_role(k, opt)
```

```python
from loader import *

L_MEM, L_KX, L_XB, L_SEL, L_SIX, L_W = 0, 8192, 24576, 28928, 29952, 32768
XROW = 544
LIMIT = 0x4f800000

MF = 0
RING = 32
ACCV = 56
QF = 64
ACCQ, ACCK = 80, 88
ACCO = 80
VX = 96
ONES = 104
SM = 108
PM, ZERO, VM0, IDX, VM1, AL16 = 112, 113, 114, 115, 116, 117
Z2, FA, FD, FS, AW, APST, AMST, AXW, AXQ, FLAG = 118, 119, 120, 121, 122, 123, 124, 125, 126, 127
SIX = VX + 4

S_STEP, S_M0, S_M1, S_MST, S_MRS = 25, 26, 27, 28, 29
S_FW, S_FR, S_REP, S_CK = 47, 53, 42, 16
S_PST, S_OX, S_PLD, S_PB, S_PC, S_MGS, S_PRS = 30, 34, 38, 42, 44, 45, 46
S_VX, S_KX = 34, 36
S_X0, S_X1, S_MG, S_FLAG, S_PUB, S_F0, S_F1, S_C, S_T, S_HF, S_KM0 = 48, 49, 50, 51, 52, 54, 55, 56, 57, 58, 60
S_AUX, S_VM0, S_PR, S_OOB = 61, 62, 63, 52

QLDS = {(0, 0): (0, 32), (1, 0): (1, 40), (0, 1): (2, 48), (1, 1): (3, 64), (0, 2): (4, 72), (1, 7): (5, 32)}
OLDS = {0: (6, 32), 1: (7, 40), 2: (8, 48), 3: (9, 0), 4: (10, 8), 7: (11, 16), 9: (12, 24), 10: (13, 56),
        14: (14, 32), 15: (15, 40)}
OA = [88, 92, 84, 80]
_res = iter(range(128, 512, 8))
QREG = {(u, t): next(_res) for u in range(2) for t in range(8) if (u, t) not in QLDS}
OREG = {n: next(_res) for n in range(16) if n not in OLDS}
KREG = {(u, t): next(_res) for u in range(2) for t in range(8)}
VREG = {(u, t): next(_res) for u in range(2) for t in range(8)}


def smf(acc, a, b):
    return f"v_smfmac_f32_16x16x64_bf16 {vr(acc, 4)}, {vr(a, 4)}, {ur(b, 8)}, v{IDX} abid:1"


def Q(u, t):
    return smf(ACCQ + 4 * u, MF + 4 * t, QLDS[(u, t)][1] if (u, t) in QLDS else QREG[(u, t)])


def Kk(u, t):
    return smf(ACCK + 4 * u, MF + 4 * t, KREG[(u, t)])


def V(u, t):
    return smf(ACCV + 4 * u, MF + 4 * t, VREG[(u, t)])


OSEQ = [(x, 0) for x in range(4)] + [(x, ks) for x in range(4) for ks in range(1, 4)]


def O(n):
    x, ks = OSEQ[n]
    return smf(OA[x], QF + 4 * ks, OLDS[n][1] if n in OLDS else OREG[n])


def wread(slot, reg, half):
    return f"ds_read_b128 {vr(reg + 4 * half, 4)}, v{AW} offset:{slot * 2048 + half * 1024}"


def dense(acc, a, b, first):
    return f"v_mfma_f32_16x16x32_bf16 {vr(acc, 4)}, {vr(a, 4)}, {vr(b, 4)}, {'0' if first else vr(acc, 4)}"


def prep_next(k, part=None):
    if part != 1:
        for (u, t), (slot, reg) in QLDS.items():
            if (u, t) != (1, 7):
                k(wread(slot, reg, 0))
                k(wread(slot, reg, 1))
    if part != 0:
        for r in list(range(ACCQ, ACCQ + 16, 2)) + list(range(ACCV, ACCV + 8, 2)):
            k(f"v_mov_b64 {vr(r, 2)}, 0")


def shot2(k):
    k(f"buffer_load_dwordx4 {vr(MF, 4)}, v{AL16}, {WS}, s{S_M0} offen sc1", nowait=True)
    k(f"buffer_load_dwordx4 {vr(MF + 4, 4)}, v{AL16}, {WS}, s{S_M1} offen sc1", nowait=True)


def advance(k, w, p):
    k(f"s_mov_b32 s{S_MST}, s{S_MRS}\ns_add_u32 s{S_MRS}, s{S_MRS}, 0x2000\ns_bitset0_b32 s{S_MRS}, 15")
    k(f"s_add_u32 m0, s{S_KM0}, {(1 - p) * 8192}")
    if w == 1:
        k(f"v_mov_b32 v{SM}, -1")


def team_prologue(k, opt):
    tid = 0
    VS, VR_, VT = 2, 4, 16
    k(f"s_lshr_b32 s3, s{S_RANK}, 2")
    k(f"s_lshl_b32 s{S_T}, s{S_WAVE}, 1\ns_xor_b32 s{S_F0}, s{S_T}, s3\ns_xor_b32 s{S_F1}, s{S_F0}, 1")
    k(f"s_lshl_b32 s{S_T}, s{S_RANK}, 8")
    k(f"s_lshl_b32 s30, s{S_F0}, 19\ns_add_u32 s30, s30, s{S_T}\ns_lshl_b32 s31, s{S_F1}, 19\ns_add_u32 s31, s31, s{S_T}")
    k(f"s_lshl_b32 s32, s{S_RANK}, 17\ns_lshl_b32 s{S_T}, s{S_WAVE}, 8\ns_add_u32 s32, s32, s{S_T}")
    k(f"s_lshl_b32 s33, s{S_WAVE}, 12")
    for ks in range(4):
        k(f"s_xor_b32 s3, s{S_WAVE}, {ks}\ns_lshl_b32 s3, s3, 15\ns_add_u32 s{34 + ks}, s32, s3")
    k(f"s_lshl_b32 s{S_F0}, s{S_F0}, 10\ns_lshl_b32 s{S_F1}, s{S_F1}, 10")
    lane_addr(k, AL16, VT, tid, add=[(0, 6, 16)])
    lane_addr(k, AW, VT, tid, add=[(0, 6, 16), (6, 2, 32768)], const=L_W)
    lane_addr(k, AMST, VT, tid, add=[(0, 2, 4), (2, 1, 256), (3, 1, 64), (4, 2, 16)])
    k(f"s_lshr_b32 s3, s{S_RANK}, 1\ns_lshl_b32 s3, s3, 9\ns_and_b32 s{S_T}, s{S_RANK}, 1\ns_lshl_b32 s{S_T}, s{S_T}, 7")
    k(f"s_add_u32 s3, s3, s{S_T}\nv_add_u32 v{AMST}, s3, v{AMST}")

    k(f"s_lshl_b32 s{S_PRS}, s{S_RANK}, 13\ns_lshl_b32 s{S_T}, s{S_WAVE}, 11\ns_add_u32 s{S_PRS}, s{S_PRS}, s{S_T}")
    k(f"s_add_u32 s{S_PRS}, s{S_PRS}, {WS_P:#x}")
    for r in range(4):
        k(f"v_mov_b32 v{SM + r}, -1")
    for i in range(2):
        k(f"buffer_store_dwordx4 {vr(SM, 4)}, v{AL16}, {WS}, s{S_PRS} offen offset:{i * 1024} sc1")
    k(f"s_lshl_b32 s{S_T}, s{S_WAVE}, 13\ns_add_u32 s{S_T}, s{S_T}, {WS_M:#x}")
    k(f"buffer_store_dword v{SM}, v{AMST}, {WS}, s{S_T} offen sc1")
    k(f"s_lshl_b32 s3, s{S_RANK}, 2\ns_add_u32 s{S_FW}, s3, {WS_F1:#x}\nv_mov_b32 v{ZERO}, 0")
    k(f"s_mov_b32 s{S_REP}, 0x01010101\ns_mov_b32 s{S_REP + 1}, 0x01010101\ns_mov_b64 exec, s[{S_REP}:{S_REP + 1}]")
    for i in range(2):
        k(f"buffer_store_dword v{ZERO}, v{AL16}, {WS}, s{S_FW} offen offset:{i * (WS_F2 - WS_F1)} sc1")
    k("s_mov_b64 exec, -1")

    qkv_setup(k, tid, VS, VR_, VT, rotate=True)
    VSO, VRO = 12, 40
    lane_addr(k, VSO, VT, tid, xor=[(0, 4, 16), (4, 2, 64)], add=[(4, 1, 16 * 1024), (5, 1, 2 * 1024)])
    lane_addr(k, VRO, VT, tid, xor=[(0, 1, 8), (1, 1, 16), (3, 1, 32), (2, 1, 256 + 64), (4, 1, 512 + 128), (5, 1, 1024),
                                    (6, 2, 4096)])
    k(f"s_lshr_b32 s3, s{S_RANK}, 3\ns_lshl_b32 s3, s3, 6\nv_xor_b32 v{VRO}, s3, v{VRO}")
    for x in range(1, 4):
        k(f"v_xor_b32 v{VRO + x}, {64 * x}, v{VRO}")

    def arrive():
        lab = k.newlabel("arr")
        k(f"s_cmp_lg_u32 s{S_WAVE}, 0\ns_cbranch_scc1 {lab}")
        k(f"s_lshl_b32 s3, s{S_FOREIGN}, 16\ns_add_u32 s3, s3, 1\nv_mov_b32 v13, s3\nv_mov_b32 v14, 0\ns_mov_b64 exec, 1")
        k(f"buffer_atomic_add v13, v14, {DBG}, 0 offen offset:{DBG_TEAM} sc1\ns_mov_b64 exec, -1")
        k.label(lab)

    units = []
    units += qkv_units(k, P_WQ, 30, VS, VR_, lambda u, t: ("lds", QLDS[(u, t)][0] * 2048) if (u, t) in QLDS else QREG[(u, t)])
    ou = []
    for ks in range(4):
        for Y in range(2):
            dma = [(VSO, 34 + ks, (8 * Y + (d >> 1) + 4 * (d & 1)) * 1024) for d in range(4)]
            reads = []
            for y0 in range(2):
                for x in range(4):
                    n = OSEQ.index((x, ks))
                    d = ("lds", OLDS[n][0] * 2048 + Y * 1024 + y0 * 8) if n in OLDS else OREG[n] + 4 * Y + 2 * y0
                    reads.append((VRO + x, y0 * 2048, d))
            ou.append(dict(dma=dma, reads=reads))
    ou[0]["pre"] = lambda: srd(k, SRD_W, P_WO, 4096 * 512 * 2)
    units += ou
    units += qkv_units(k, P_WK, 30, VS, VR_, lambda u, t: KREG[(u, t)])
    units += qkv_units(k, P_WV, 30, VS, VR_, lambda u, t: VREG[(u, t)])
    first_pre = units[0]["pre"]
    units[0]["pre"] = lambda: (arrive(), first_pre())
    run_units(k, units, [0, 16384], 33, S_T, VT, aW=AW, mod=opt.get("wmod", "nt"))

    if opt.get("total"):
        k("s_memrealtime s[94:95]")
    lane_addr(k, FA, VT, tid, add=[(0, 5, 4)])
    lane_addr(k, 20, VT, tid, add=[(0, 3, 128), (3, 3, 0x800000)])
    k(f"v_lshlrev_b32 v21, 3, v20\nv_cmp_lt_u32 vcc, 1023, v20\nv_cndmask_b32 v20, v20, v21, vcc")
    k(f"v_cmp_lt_u32 vcc, 191, v{tid}\nv_cndmask_b32 v{AMST}, v{AMST}, v20, vcc")
    lane_addr(k, 21, VT, tid, add=[(0, 1, 8192), (1, 5, 128)])
    k(f"v_cndmask_b32 v{FD}, 0, v21, vcc")
    k(f"v_mov_b32 v{Z2}, 0\nv_mov_b32 v{FS}, 0\nv_mov_b32 v{FLAG}, 0")
    lane_addr(k, APST, VT, tid, add=[(0, 5, 8), (5, 1, 8192)])
    lane_addr(k, AXW, VT, tid, add=[(0, 4, 4), (4, 2, 2 * XROW), (6, 2, 64)], const=L_XB)
    lane_addr(k, AXQ, VT, tid, add=[(0, 1, XROW), (2, 2, 2 * XROW), (4, 2, 16)], const=L_XB)
    k(f"s_mov_b32 s{S_HF}, 0xcccccccc\ns_mov_b32 s{S_HF+1}, 0xcccccccc")
    k(f"v_mov_b32 v{IDX}, 0x44440000\nv_mov_b32 v{VT}, 0xeeee0010\nv_cndmask_b32 v{IDX}, v{IDX}, v{VT}, s[{S_HF}:{S_HF+1}]")
    k(f"v_mov_b32 v{ZERO}, 0")
    for r in range(4):
        k(f"v_mov_b32 v{ONES + r}, 0x3f803f80")
    lane_addr(k, 20, VT, tid, add=[(3, 1, 1), (1, 1, 2)])
    lane_addr(k, 21, VT, tid, add=[(0, 1, 16)])
    k(f"v_mov_b32 v22, 0x3f80\nv_lshlrev_b32 v21, v21, v22")
    for a in range(4):
        k(f"v_cmp_eq_u32 vcc, {a & 1}, v20\nv_cndmask_b32 v{24 + a}, 0, v21, vcc")
    lane_addr(k, 28, VT, tid, add=[(2, 1, 0xaaaa)], const=0x4444)
    k(f"ds_write_b128 v{AL16}, v[24:27] offset:{L_SEL}")
    k(f"ds_write_b32 v{AL16}, v28 offset:{L_SIX}")
    k(f"s_mov_b32 s{S_C}, {opt['c_bits']:#x}")
    k(f"s_lshr_b32 s3, s{S_RANK}, 3")
    for x in range(4):
        k(f"s_xor_b32 s{S_T}, s3, {x}\ns_lshl_b32 s{S_T}, s{S_T}, 14\ns_lshl_b32 s{S_PST + x}, s{S_WAVE}, 16")
        k(f"s_add_u32 s{S_PST + x}, s{S_PST + x}, s{S_T}\ns_lshl_b32 s{S_T}, s{S_RANK}, 8")
        k(f"s_add_u32 s{S_PST + x}, s{S_PST + x}, s{S_T}\ns_add_u32 s{S_PST + x}, s{S_PST + x}, {WS_P:#x}")
    k(f"s_bfe_u32 s3, s{S_RANK}, 0x20001")
    for x in range(4):
        k(f"s_xor_b32 s{S_T}, s3, {x}\ns_lshl_b32 s{S_T}, s{S_T}, 11\ns_lshl_b32 s{S_PLD + x}, s{S_RANK}, 13")
        k(f"s_add_u32 s{S_PLD + x}, s{S_PLD + x}, s{S_T}\ns_add_u32 s{S_PLD + x}, s{S_PLD + x}, {WS_P:#x}")
    k(f"s_and_b32 s3, s{S_RANK}, 7\ns_lshl_b32 s3, s3, 7\ns_add_u32 s{S_FR}, s3, {WS_F1:#x}")
    k(f"s_lshl_b32 s{S_KX}, s{S_RANK}, 14\ns_lshl_b32 s{S_T}, s{S_WAVE}, 10\ns_add_u32 s{S_KX}, s{S_KX}, s{S_T}")
    k(f"s_add_u32 s{S_KX}, s{S_KX}, {WS_KV:#x}\ns_add_u32 s{S_KX + 1}, s{S_KX}, {8192 - 1024}")
    k(f"s_add_u32 s{S_VX}, s{S_KX}, 4096\ns_add_u32 s{S_VX + 1}, s{S_VX}, 8192")
    k(f"s_lshl_b32 s{S_X0}, s{S_RANK}, 14\ns_add_u32 s{S_X0}, s{S_X0}, {WS_KV + 2 * 0x80000:#x}\ns_add_u32 s{S_X1}, s{S_X0}, 4096")
    k(f"s_lshl_b32 s{S_KM0}, s{S_WAVE}, 11\ns_add_u32 s{S_KM0}, s{S_KM0}, {L_KX}")
    k(f"s_lshl_b32 s{S_FLAG}, s{S_RANK}, 8\ns_add_u32 s{S_FLAG}, s{S_FLAG}, {WS_FKV:#x}")
    k(f"s_add_u32 s{S_M0}, s{S_F0}, {WS_MG:#x}\ns_add_u32 s{S_M1}, s{S_F1}, {WS_MG:#x}")
    k(f"s_mov_b32 s{S_MG}, {WS_SIZE:#x}")
    k(f"s_mov_b32 s{S_MRS}, {WS_M + 0x2000:#x}")
    k(f"s_mov_b32 s{S_STEP}, 0\ns_mov_b32 s{S_OOB}, 0")

    poll_word(k, DBG, ZERO, 0, 20, N_LN, 1, imm=DBG_LN)
    poll_word(k, DBG, ZERO, 0, 20, 32, 2, mask=0xffff, imm=DBG_TEAM)
    k(f"v_readfirstlane_b32 s{S_FOREIGN}, v20")
    k(f"s_lshr_b32 s{S_FOREIGN}, s{S_FOREIGN}, 16")
    k(f"v_lshrrev_b32 v22, 2, v{AL16}\nv_min_u32 v22, 8, v22")
    poll_word(k, WS, 22, f"s{S_FLAG}", 20, 1, 3)
    k(f"s_add_u32 s{S_FLAG}, s{S_FLAG}, 12")
    k(f"s_mov_b32 m0, s{S_KM0}")
    for i in range(2):
        k(f"buffer_load_dwordx4 v{AL16}, {WS}, s{S_KX + i} offen offset:{i * 1024} sc1 lds")
    for r in (S_KX, S_KX + 1):
        k(f"s_add_u32 s{r}, s{r}, 0x80000")
    k(f"s_lshr_b32 s3, s{S_WAVE}, 1\ns_lshl_b32 s3, s3, 19\ns_and_b32 s{S_T}, s{S_WAVE}, 1\ns_lshl_b32 s{S_T}, s{S_T}, 13")
    k(f"s_add_u32 s3, s3, s{S_T}\ns_add_u32 s3, s3, s{S_X0}\ns_sub_u32 s3, s3, {2 * 0x80000:#x}\nv_lshlrev_b32 v22, 3, v{AL16}")
    k(f"buffer_load_dword v20, v22, {WS}, s3 offen sc1")
    if opt.get("kpos", 0) >= 2:
        k(f"s_sub_u32 s{S_X0}, s{S_X0}, 0x80000\ns_sub_u32 s{S_X1}, s{S_X1}, 0x80000")
    for i in range(2):
        k(f"buffer_load_dwordx4 {vr(VX + 4 * i, 4)}, v{AL16}, {WS}, s{S_VX + i} offen sc1")
    prep_next(k)
    if opt.get("total"):
        k("s_memrealtime s[96:97]\ns_memtime s[92:93]")
    k.wait(vm=0, lgkm=0)
    advance(k, 1, 0)
    shot2(k)
    k.wait(vm=0)


def team_step(k, w, p, st, tag, opt):
    stamp = opt.get("stamp")
    kvstep = opt.get("kvstep", 0x80000)
    comm = not opt.get("nocomm")

    def T(i):
        if stamp and i in stamp:
            j = stamp.index(i)
            k(f"s_memtime s[{92 + 2 * j}:{93 + 2 * j}]")
            if j == 0 and opt.get("real"):
                k("s_memrealtime s[100:101]")

    cnt = [0]

    def after_mfma():
        T(100 + cnt[0])
        cnt[0] += 1
    k.on_mfma = after_mfma if stamp else None

    KXR = {(0, 0): 40, (0, 1): 44, (1, 0): 48, (1, 1): 52, (2, 0): 32, (2, 1): 36, (3, 0): 40, (3, 1): 44}
    KMR = [48, 52, 32, 36]
    SX = ACCQ
    EX = SX + 4
    PX, AL, A0, A1 = QF, QF + 4, QF + 8, ACCK
    RA, SEL = SM, VX
    hf = f"s[{S_HF}:{S_HF+1}]"
    moff = lambda t: L_MEM + (t ^ (2 * w)) * 1024
    mread = lambda t: f"ds_read_b128 {vr(MF + 4 * t, 4)}, v{AL16} offset:{moff(t)}"
    mwrite = lambda t: f"ds_write_b128 v{AL16}, {vr(MF + 4 * t, 4)} offset:{moff(t)}"
    kxread = lambda ks, tau: f"ds_read_b128 {vr(KXR[(ks, tau)], 4)}, v{AL16} offset:{L_KX + p * 8192 + ks * 2048 + tau * 1024}"
    add2 = lambda acc, i: f"v_add_f32 v{acc + i}, v{acc + i}, v{acc + 2 + i}"
    cvt = lambda d, a, b: f"v_cvt_pk_bf16_f32 v{d}, v{a}, v{b}"
    pack = lambda acc, i: cvt(acc + i, acc + i, acc + 4 + i)
    sx = lambda ks, tau: dense(SX + 4 * tau, KXR[(ks, tau)], QF + 4 * ks, ks == 0)
    oh = lambda n, half: wread(OLDS[n][0], OLDS[n][1], half)
    xrd = lambda reg, off: f"ds_read_b128 {vr(reg, 4)}, v{AXQ} offset:{off}"
    xwr = lambda r, off: f"ds_write2_b32 v{AXW}, v{r}, v{r + 1} offset0:{off} offset1:{off + XROW // 4}"
    sel = lambda r: f"v_cndmask_b32 v{SX + r}, v{SX + r}, v{SX + 4 + r}, {hf}"
    ex = lambda d, r: f"v_exp_f32 v{d}, v{r}"
    W = lambda n: f"s_waitcnt lgkmcnt({n})"
    N = lambda n: f"s_nop {n - 1}"
    dma = lambda so, i: f"buffer_load_dwordx4 v{AL16}, {WS}, s{so + i} offen offset:{i * 1024} {opt.get('kvmod', 'sc1')} lds"
    d16 = lambda acc, b, c: f"v_mfma_f32_16x16x16_bf16 {vr(acc, 4)}, {vr(PM, 2)}, {vr(b, 2)}, {c}"
    s32 = lambda acc, b: f"v_smfmac_f32_16x16x32_bf16 {vr(acc, 4)}, {vr(PX, 2)}, {vr(b, 4)}, v{IDX} abid:2"
    only = lambda who, ins, alt="": ins if w == who else alt
    L = lambda name, pp=p: f"L_t{tag}{w}{pp}_{name}"

    def notice(hop):
        return (f"s_mov_b64 exec, s[{S_REP}:{S_REP + 1}]\n"
                f"buffer_store_dword v{FS}, v{AL16}, {WS}, s{S_FW} offen offset:{hop * (WS_F2 - WS_F1)} {st}\ns_mov_b64 exec, -1")

    def probe(hop):
        k(f"buffer_load_dword v{FD}, v{FA}, {WS}, s{S_FR} offen offset:{hop * (WS_F2 - WS_F1)} sc1", nowait=True)
        k.vm[-1] = []

    def spin(hop, code):
        lab, out = k.newlabel("spin"), k.newlabel("spun")
        k.label(lab)
        for i in range(opt.get("unroll", 24) if hop else 4):
            k(f"v_cmp_gt_u32 vcc, s{S_STEP}, v{FD}", nowait=True)
            probe(hop)
            k(f"s_cbranch_vccz {out}")
        spend(k, code)
        k(f"s_branch {lab}")
        k.label(out)

    k.label(L("again"), vm=0, lgkm=0)
    ex_ = 1 if stamp else 0
    T(8)
    k.wait(vm=1 + ex_, lgkm=0)
    T(0)
    k(mwrite(0))
    kpos = opt.get("kpos", 0)
    vld = lambda i: f"buffer_load_dwordx4 {vr(VX + 4 * i, 4)}, v{AL16}, {WS}, s{S_VX + i} offen sc1"
    warm = lambda i: f"buffer_load_dword v{FLAG}, v{FD}, {WS}, s{S_X0 + i} offen sc1"
    adv = lambda r: f"s_add_u32 s{r}, s{r}, {kvstep:#x}"
    pub = f"buffer_store_dword v{FLAG}, v{AMST}, {WS}, s{S_MG} offen sc1"
    flagld = f"buffer_load_dword v{FLAG}, v{ZERO}, {WS}, s{S_FLAG} offen sc1"
    mres = f"buffer_store_dword v{SM}, v{AMST}, {WS}, s{S_MRS} offen {st}"
    note1 = f"buffer_store_dword v{FS}, v{AMST}, {WS}, s{S_FW} offen {st}"
    plan = [
        (Q(0, 0), [f"s_waitcnt vmcnt({ex_})", L("redo1") + ":", mwrite(1)]),
        (Q(0, 1), [N(2), vld(0) if kpos < 4 else N(1)]),
        (Q(1, 0), [N(2), vld(1) if kpos < 4 else N(1)]),
        (Kk(0, 0), [dma(S_KX, 0) if kpos == 0 else "", f"v_cmp_u_f32 vcc, v{ACCQ}, v{ACCQ + 1}"]),
        (Kk(1, 0), [dma(S_KX, 1) if kpos == 0 else "", f"v_cmp_u_f32 s[{S_CK}:{S_CK + 1}], v{ACCQ + 2}, v{ACCQ + 3}"]),
        (Q(1, 1), [f"s_or_b64 vcc, vcc, s[{S_CK}:{S_CK + 1}]", f"s_cbranch_scc1 {L('miss')}" if comm else N(1), L("cont") + ":",
                   dma(S_KX, 0) + "\n" + dma(S_KX, 1) if kpos == 1 else "", W(0), "s_barrier"]),
        (Kk(0, 1), [mread(2), f"s_add_u32 s{S_STEP}, s{S_STEP}, 1"]),
        (Kk(1, 1), [mread(3), f"s_add_u32 s{S_M0}, s{S_MST}, s{S_F0}"]),
        (V(0, 0), [mread(4), f"s_add_u32 s{S_M1}, s{S_MST}, s{S_F1}"]),
        (V(1, 0), [mread(5)]),
        (Q(0, 2), [mread(6)]),
        (Q(0, 3), [mread(7)]),
        (Q(0, 4), [{0: pub, 1: mres, 2: flagld, 3: ""}[w]]),
        (Q(0, 5), [wread(5, 32, 0)]),
        (Q(0, 6), [wread(5, 32, 1)]),
        (Q(0, 7), [N(2), kxread(0, 0)]),
        (Q(1, 2), [N(3)]),
        (Q(1, 3), [kxread(0, 1), add2(ACCQ, 0)]),
        (Q(1, 4), [kxread(1, 0), add2(ACCQ, 1)]),
        (Q(1, 5), [kxread(1, 1)]),
        (Q(1, 6), [W(4), f"v_mov_b32 v{FS}, s{S_STEP}" if w in (0, 3) else ""]),
        (Q(1, 7), [adv(S_VX), adv(S_VX + 1), kxread(2, 0)]),
        (Kk(0, 2), [adv(S_KX), adv(S_KX + 1), kxread(2, 1)] if kpos < 2 else [N(2), kxread(2, 1)]),
        (Kk(0, 3), [add2(ACCQ + 4, 0), add2(ACCQ + 4, 1)]),
        (Kk(0, 4), [pack(ACCQ, 0), pack(ACCQ, 1)]),
        (Kk(0, 5), [xwr(ACCQ, 0)]),
        (Kk(0, 6), []),
        (Kk(0, 7), [N(3)]),
        (Kk(1, 2), [N(2), f"s_waitcnt vmcnt({(4 if w == 3 else 3) if kpos < 2 else (2 if w == 3 else 1)})"]),
        (Kk(1, 3), [add2(ACCK, 0)]),
        (Kk(1, 4), [add2(ACCK, 1)]),
        (Kk(1, 5), [W(0), "s_barrier", xrd(QF, 0)]),
        (Kk(1, 6), [xrd(QF + 4, 64)]),
        (Kk(1, 7), [N(2), xrd(QF + 8, 128)]),
        (V(0, 1), [xrd(QF + 12, 192), W(3)]),
        (sx(0, 0), [N(1), add2(ACCK + 4, 0), add2(ACCK + 4, 1)]),
        (sx(0, 1), [W(1), cvt(ACCK + 4, ACCK, ACCK + 4), cvt(ACCK + 5, ACCK + 1, ACCK + 5)]),
        (sx(1, 0), [kxread(3, 0)]),
        (sx(1, 1), [kxread(3, 1)]),
        (sx(2, 0), [xwr(ACCK + 4, 64)]),
        (sx(2, 1), [N(2), W(2)]),
        (sx(3, 0), [N(2), W(1)]),
        (sx(3, 1), [N(1), f"v_mov_b64 {vr(A1, 2)}, 0", f"v_mov_b64 {vr(A1 + 2, 2)}, 0"]),
        (V(0, 2), [N(2), oh(1, 0)]),
        (V(0, 3), [sel(0)]),
        (V(0, 4), [W(1), "s_barrier", xrd(KMR[0], 256)]),
        (V(0, 5), [xrd(KMR[1], 320), sel(1)]),
        (V(0, 6), [xrd(KMR[2], 384), sel(2)]),
        (V(0, 7), [xrd(KMR[3], 448), sel(3)]),
        (dense(SM, KMR[0], QF, True), [W(2), ex(EX, SX)]),
        (dense(SM, KMR[1], QF + 4, False), [W(1), ex(EX + 1, SX + 1)]),
        (dense(SM, KMR[2], QF + 8, False), [W(0), ex(EX + 2, SX + 2)]),
        (dense(SM, KMR[3], QF + 12, False), [N(1), ex(EX + 3, SX + 3)]),
        (V(1, 1), [oh(0, 0), add2(ACCV, 0)]),
        (V(1, 2), [oh(0, 1), add2(ACCV, 1)]),
        (V(1, 3), [oh(1, 1), f"v_cndmask_b32 v{SM}, v{SM}, v{SM + 1}, {hf}"]),
        (V(1, 4), [oh(2, 0), f"v_mul_f32 v{SM}, s{S_C}, v{SM}"]),
        (V(1, 5), [oh(2, 1), ex(SM + 1, SM)]),
        (V(1, 6), [oh(3, 0), f"v_cvt_pk_bf16_f32 v{PM}, v{SM + 1}, 0"]),
        (V(1, 7), [oh(3, 1), f"v_lshlrev_b32 v{PM}, v{IDX}, v{PM}", cvt(VM0, ACCV, ACCV + 1)]),
        (d16(AL, ONES, 0), [N(1), cvt(PX, EX, EX + 1), cvt(PX + 1, EX + 2, EX + 3)]),
        (d16(A0, VM0, 0), [add2(ACCV + 4, 0), add2(ACCV + 4, 1)]),
        (s32(AL, ONES), [oh(4, 0), cvt(VM1, ACCV + 4, ACCV + 5)]),
        (s32(A1, VX + 4), [N(2), oh(4, 1)]),
        (s32(A0, VX), [N(1), add2(AL, 0)]),
        (d16(A1, VM1, vr(A1, 4)), [oh(7, 0), add2(AL, 1)]),
    ]
    if w == 3:
        for i, n in enumerate(opt.get("wpos", (12, 16))):
            if n in (3, 4):
                plan[n][1].insert(0, warm(i))
            else:
                plan[n][1].append(warm(i))
    f1 = opt.get("f1", 66)
    if w == 3 and f1 < 66:
        if plan[f1][1][0].startswith("s_nop 0"):
            plan[f1][1].pop(0)
        plan[f1][1].insert(0, note1)
    for n, (m, fill) in enumerate(plan):
        k(m)
        for f in fill:
            k(f, nowait=(f == warm(1)))
        if n == 29 and opt.get("kvwait"):
            k.wait(vm=1)
            T(18)
            k.wait(vm=0)
            T(19)

    def finish_o():
        k(f"v_rcp_f32 v{AL + 2}, v{AL}\nv_rcp_f32 v{AL + 3}, v{AL + 1}")
        k(f"v_pk_add_f32 {vr(A0, 2)}, {vr(A0, 2)}, {vr(A0 + 2, 2)}")
        k(f"v_pk_mul_f32 {vr(A0, 2)}, {vr(A0, 2)}, {vr(AL + 2, 2)}")
        k(f"v_max3_f32 v{SM + 2}, v{AL}, v{AL + 1}, v{AL + 2}\nv_max_f32 v{SM + 2}, v{SM + 2}, v{AL + 3}")
        k(f"v_pk_add_f32 {vr(A1, 2)}, {vr(A1, 2)}, {vr(A1 + 2, 2)}")
        k(f"v_pk_mul_f32 {vr(A1, 2)}, {vr(A1, 2)}, {vr(AL + 2, 2)}")
        k(cvt(A0, A0, A1) + "\n" + cvt(A0 + 1, A0 + 1, A1 + 1))
    finish_o()
    T(16)
    hook, k.on_mfma = k.on_mfma, None
    k(d16(OA[0], Z2, 0))
    k(xwr(A0, 0))
    k(d16(OA[1], Z2, 0))
    k(xrd(QF, 64 * w))
    k(f"v_cmp_nge_f32 vcc, {LIMIT:#x}, v{SM + 2}")
    k(d16(OA[2], Z2, 0))
    k(N(2))
    k(f"s_cbranch_vccnz {L('big')}" if comm else N(1))
    k.label(L("back"))
    k(d16(OA[3], Z2, 0))
    if w == 3 and f1 == 66:
        k(note1)
    k.on_mfma = hook
    k.wait(lgkm=1)
    T(17)
    k("s_barrier")
    k(xrd(QF + 4, 64 * (1 ^ w)))
    T(4)

    cv = lambda x, i: cvt(OA[x] + i, OA[x] + i, OA[x] + 2 + i)
    tg = lambda x: f"v_or_b32 v{OA[x]}, 1, v{OA[x]}" if p else f"v_and_b32 v{OA[x]}, -2, v{OA[x]}"
    pst = lambda x: f"buffer_store_dwordx2 {vr(OA[x], 2)}, v{APST}, {WS}, s{S_PST + x} offen {st}"
    plan = [
        [xrd(QF + 8, 64 * (2 ^ w))],
        [xrd(QF + 12, 64 * (3 ^ w))],
        [oh(7, 1)],
        [oh(9, 0)],
        [oh(9, 1)],
        [oh(10, 0)],
        [W(3), N(1), oh(10, 1)],
        [N(2), oh(14, 0)],
        [W(3), cv(0, 0), cv(0, 1), tg(0)],
        [pst(0), W(1)],
        [N(2), oh(14, 1)],
        [oh(15, 0), cv(1, 0), cv(1, 1)],
        [oh(15, 1), tg(1)],
        [W(2), N(1), pst(1)],
        [W(0), cv(2, 0), cv(2, 1), tg(2)],
        [pst(2)],
    ]
    pr1 = opt.get("pr1", 10)
    for n in range(16):
        k(O(n))
        if w == 0 and n == pr1:
            probe(0)
        for f in plan[n]:
            k(f)
    k(cv(3, 0) + "\n" + cv(3, 1) + "\n" + tg(3))
    k(pst(3))
    T(5)

    def pld(gate=None):
        for i in range(8):
            if gate and i % 2 == 0 and (i == 0 or gate[i >> 1] != gate[(i >> 1) - 1]):
                k.wait(vm=3 - gate[i >> 1] + i)
                if i == 0:
                    T(14)
            k(f"buffer_load_dwordx4 {vr(MF + 4 * i, 4)}, v{AL16}, {WS}, s{S_PLD + (i >> 1)} offen offset:{(i & 1) * 1024} sc1")

    def reduce_all():
        for x in range(4):
            tags = [f"v_bitop3_b32 v{VM0}, {('v%d' % VM0) if r else (1 if p else -2)}, v{r}, v{r + 2} bitop3:{0x80 if p else 0xfe:#x}"
                    for r in (8 * x, 8 * x + 4)]
            k(f"v_smfmac_f32_16x16x64_bf16 {vr(RA, 4)}, {vr(SEL, 4)}, {vr(MF + 8 * x, 8)}, v{SIX}")
            k("\n".join(tags))
        k(f"v_cmp_eq_u32 vcc, {0 if p else -1}, v{VM0}")

    f2 = opt.get("f2", 16)
    cug = opt.get("cug")
    if w == 0:
        k(f"ds_read_b128 {vr(SEL, 4)}, v{AL16} offset:{L_SEL}")
        k(f"ds_read_b32 v{SIX}, v{AL16} offset:{L_SIX}")
        clears = [RA, RA + 2] + list(range(ACCQ, ACCQ + 16, 2)) + list(range(ACCV, ACCV + 8, 2))
        nlate = max(f2 - 8, 0)
        prep_next(k, part=0)
        for r in clears[nlate:]:
            k(f"v_mov_b64 {vr(r, 2)}, 0")
        k(f"s_lshl_b32 s{S_MG}, s{S_STEP}, 13\ns_add_u32 s{S_MG}, s{S_MG}, {WS_MG:#x}")
        k.wait(vm=4 if pr1 <= 9 else (3 if pr1 <= 13 else 2))
        if comm and not opt.get("nolate"):
            k(f"v_cmp_gt_u32 vcc, s{S_STEP}, v{FD}\ns_cbranch_vccnz {L('late')}", nowait=True)
        k.label(L("fetch"))
        if cug is not None:
            k.wait(vm=3 - cug)
            k("s_barrier")
        pld(gate=opt.get("gate", (1, 2, 2, 3)))
        k("s_barrier")
        if f2 >= 8:
            for r in clears[:nlate]:
                k(f"v_mov_b64 {vr(r, 2)}, 0")
            k(notice(1))
        reduce_all()
        k(f"s_cbranch_vccnz {L('retry')}" if comm else N(1))
        k.label(L("good"))
        k(cvt(FLAG, RA, RA + 1))
        k(f"buffer_store_dword v{FLAG}, v{AMST}, {WS}, s{S_MST} offen {st}")
        T(6)
        k(f"s_cmp_eq_u32 s{S_STEP}, 63\ns_cbranch_scc1 L_team_last")
        if kpos == 4:
            k(vld(0) + "\n" + vld(1))
        advance(k, w, 1 - p)
    else:
        k(f"s_cmp_eq_u32 s{S_STEP}, 63\ns_cbranch_scc1 L_exit")
        if w > 1:
            if cug is not None:
                k.wait(vm=3 - cug)
                k("s_barrier")
            k("s_barrier")
            if kpos >= 2:
                if opt.get("kdel"):
                    prep_next(k, part=1)
                for j in range(2):
                    k(f"s_movk_i32 m0, {L_KX + (1 - p) * 8192 + (2 * (w - 2) + j) * 2048}")
                    for i in range(2):
                        k(f"s_add_u32 s{S_T}, s{S_KX + i}, {(2 * (w - 2) + j - w) * 1024 & 0xffffffff:#x}")
                        k(f"buffer_load_dwordx4 v{AL16}, {WS}, s{S_T} offen offset:{i * 1024} sc1 lds")
                k(adv(S_KX) + "\n" + adv(S_KX + 1))
                if kpos == 4:
                    k(vld(0) + "\n" + vld(1))
        prep_next(k, part=0 if (w > 1 and kpos >= 2 and opt.get("kdel")) else None)
        advance(k, w, 1 - p)
        k.wait(vm=(10 if kpos == 4 else 8) if (w > 1 and kpos >= 2) else 4)
        if w == 1:
            if cug is not None:
                k.wait(vm=3 - cug)
                k("s_barrier")
            k("s_barrier")
            if kpos == 4:
                k(vld(0) + "\n" + vld(1))
            if comm:
                spin(1, 20)
        if w == 2:
            k(f"v_cmp_eq_u32 vcc, 0, v{FLAG}\ns_cbranch_vccnz {L('noflag')}")
            k.label(L("flag"))
            k(f"s_cmp_lt_u32 s{S_STEP}, 60\ns_cselect_b32 s{S_T}, 4, 0\ns_add_u32 s{S_FLAG}, s{S_FLAG}, s{S_T}")
        if w == 3:
            k(f"s_cmp_lt_u32 s{S_STEP}, {61 if kpos < 2 else 62}\ns_cselect_b32 s{S_T}, {kvstep:#x}, 0")
            k(f"s_add_u32 s{S_X0}, s{S_X0}, s{S_T}\ns_add_u32 s{S_X1}, s{S_X1}, s{S_T}")
    k("s_barrier")
    T(7)
    shot2(k)
    if stamp:
        stamp_out(k, stamp)
    k.on_mfma = None

    def cold():
        if w == 0:
            k.fresh()
            k.label(L("late"))
            if opt.get("total"):
                k(f"s_add_u32 s{S_OOB}, s{S_OOB}, 0x1000000")
            spin(0, 19)
            for i in range(opt.get("late", 1)):
                probe(0)
                k.wait(vm=0)
            k(f"s_branch {L('fetch')}")

            k.fresh()
            k.label(L("retry"))
            pld()
            spend(k, 17)
            if opt.get("total"):
                k(f"s_add_u32 s{S_OOB}, s{S_OOB}, 1")
            k(f"v_mov_b64 {vr(RA, 2)}, 0\nv_mov_b64 {vr(RA + 2, 2)}, 0")
            reduce_all()
            k(f"s_cbranch_vccnz {L('retry')}")
            k.nop(3)
            k(f"s_branch {L('good')}")
        if w == 2:
            k.fresh()
            k.label(L("noflag"))
            poll_word(k, WS, ZERO, f"s{S_FLAG}", FLAG, 1, 18)
            k(f"s_branch {L('flag')}")

        k.fresh()
        k.label(L("miss"))
        def absent():
            k(f"v_max3_u32 v{PM}, v0, v1, v2\nv_max3_u32 v{VM0}, v3, v4, v5\nv_max3_u32 v{PM}, v{PM}, v6, v7", nowait=True)
            k(f"v_max_u32 v{PM}, v{PM}, v{VM0}\nv_cmpx_eq_u32 vcc, -1, v{PM}")
        k.wait(lgkm=0)
        absent()
        k(f"s_cbranch_execz {L('nan')}")
        if opt.get("total"):
            k(f"s_add_u32 s{S_OOB}, s{S_OOB}, 0x10000")
        k.label(L("reload"))
        shot2(k)
        spend(k, 16)
        absent()
        k(f"s_cbranch_execnz {L('reload')}")
        k("s_mov_b64 exec, -1")
        for r in range(ACCQ, ACCQ + 16, 2):
            k(f"v_mov_b64 {vr(r, 2)}, 0")
        k(mwrite(0), nowait=True)
        k(Q(0, 0), nowait=True)
        k(f"s_branch {L('redo1')}")
        k.label(L("nan"))
        k(f"s_mov_b64 exec, -1\ns_branch {L('cont')}")

        k.fresh()
        k.label(L("big"))
        MX, M2 = SM + 2, SM + 3
        k.wait(lgkm=0)
        k(f"v_max3_f32 v{MX}, v{SX}, v{SX + 1}, v{SX + 2}\nv_max3_f32 v{MX}, v{MX}, v{SX + 3}, v{SM}")
        k(f"v_max_f32_dpp v{MX}, v{MX}, v{MX} quad_perm:[2,3,0,1] row_mask:0xf bank_mask:0xf")
        xreduce(k, "v_max_f32", MX, M2)
        for r in [SX + i for i in range(4)] + [SM]:
            k(f"v_sub_f32 v{r}, v{r}, v{MX}\nv_exp_f32 v{r}, v{r}")
        k(cvt(PX, SX, SX + 1) + "\n" + cvt(PX + 1, SX + 2, SX + 3))
        k(f"v_cvt_pk_bf16_f32 v{PM}, v{SM}, 0\nv_lshlrev_b32 v{PM}, v{IDX}, v{PM}")
        for acc, bm in ((AL, ONES), (A0, VM0), (A1, VM1)):
            k(d16(acc, bm, 0))
        for acc, bx in ((AL, ONES), (A0, VX), (A1, VX + 4)):
            k(s32(acc, bx))
        k(add2(AL, 0) + "\n" + add2(AL, 1))
        finish_o()
        k(xwr(A0, 0))
        k(xrd(QF, 64 * w))
        for x in range(3):
            k(d16(OA[x], Z2, 0))
        k(f"s_branch {L('back')}")
    return cold


def stamp_out(k, stamp):
    k.wait(lgkm=0)
    k(f"s_lshl_b32 s3, s{S_RANK}, 2\ns_add_u32 s3, s3, s{S_WAVE}\ns_lshl_b32 s3, s3, 6\ns_add_u32 s3, s3, s{S_STEP}")
    k(f"s_lshl_b32 s3, s3, 5\ns_add_u32 s3, s3, {WS_STAMP:#x}")
    for j, i in enumerate(stamp):
        k(f"v_writelane_b32 v{VM1}, s{92 + 2 * j}, {j}")
    k(f"v_writelane_b32 v{VM1}, s100, 4\ns_mov_b64 exec, 31")
    k(f"buffer_store_dword v{VM1}, v{FA}, {WS}, s3 offen\ns_mov_b64 exec, -1")


def team(k, opt):
    k.fresh()
    k.label("L_team")
    team_prologue(k, opt)
    modes = (("fast", ""), ("slow", "sc1"))
    if opt.get("noslow"):
        modes = (("fast", ""),)
        k.label("L_team_slow")
    if opt.get("force_slow"):
        k(f"s_mov_b32 s{S_FOREIGN}, 1")
    k(f"s_cmp_lg_u32 s{S_FOREIGN}, 0\ns_cbranch_scc1 {'L_exit' if opt.get('noslow') else 'L_team_slow'}")
    for tag, st in modes:
        k.label(f"L_team_{tag}")
        for w in range(1, 4):
            k(f"s_cmp_eq_u32 s{S_WAVE}, {w}\ns_cbranch_scc1 L_t{tag}{w}0_again")
        for w in range(4):
            k.raw(".p2align 6")
            k.fresh()
            cold = [team_step(k, w, p, st, tag, opt) for p in range(2)]
            k(f"s_branch L_t{tag}{w}0_again")
            for c in cold:
                c()
    k.fresh()
    k.label("L_team_last")
    k(f"buffer_store_dword v{FLAG}, v{AMST}, {WS}, s{S_MG} offen sc1")
    k("s_branch L_exit")
```

```python
import struct, math, sys
from common import *
import team as T

HEADER = open("recurrent_scan__memory_aug_recurrent_mem_tr__geglu_ffn__prompt.s.ref").read().split("; Override launch")[0]


def f2u(x):
    return struct.unpack("<I", struct.pack("<f", x))[0]


def entry(k, opt):
    k("s_cmp_ge_u32 s2, 256\ns_cbranch_scc1 L_end")
    if opt.get("total"):
        k("s_memrealtime s[100:101]")
    k(f"s_load_dwordx16 s[{PTR}:{PTR+15}], s[0:1], 0")
    k(f"s_load_dwordx8 s[{PTR+16}:{PTR+23}], s[0:1], 64")
    k(f"s_load_dwordx4 s[{PTR+24}:{PTR+27}], s[0:1], 96")
    k(f"s_getreg_b32 s{S_LIST}, hwreg(HW_REG_XCC_ID, 0, 3)")
    if opt.get("fake_xcc"):
        k(opt["fake_xcc"])
    k(f"v_lshrrev_b32 v1, 6, v0\ns_mov_b32 s{S_FOREIGN}, 0\ns_mov_b32 s{S_BUDGET}, {BUDGET}\nv_readfirstlane_b32 s{S_WAVE}, v1")
    k("v_mov_b32 v2, 0")
    k.wait(lgkm=0)
    srd(k, SRD_WS, P_WS, WS_SIZE)
    srd(k, SRD_DBG, P_DBG, 256)
    k(f"s_cmp_lg_u32 s{S_WAVE}, 0\ns_cbranch_scc1 L_claimed")
    k("s_mov_b64 exec, 1")
    k.label("L_claim")
    k(f"v_mov_b32 v1, 1\ns_lshl_b32 s3, s{S_LIST}, 5")
    k(f"buffer_atomic_add v1, v2, {DBG}, s3 offen sc0 sc1")
    k(f"v_readfirstlane_b32 s{S_RANK}, v1")
    k(f"s_cmp_lt_u32 s{S_RANK}, 32\ns_cbranch_scc1 L_got")
    k(f"s_add_u32 s{S_LIST}, s{S_LIST}, 1\ns_and_b32 s{S_LIST}, s{S_LIST}, 7\ns_add_u32 s{S_FOREIGN}, s{S_FOREIGN}, 1")
    k(f"s_cmp_lt_u32 s{S_FOREIGN}, 8\ns_cbranch_scc1 L_claim")
    k(f"s_mov_b32 s{S_LIST}, 8\ns_mov_b32 s{S_RANK}, 0")
    k.label("L_got")
    k(f"s_lshl_b32 s3, s{S_LIST}, 8\ns_or_b32 s3, s3, s{S_RANK}\ns_lshl_b32 s{S_FOREIGN}, s{S_FOREIGN}, 16\ns_or_b32 s3, s3, s{S_FOREIGN}")
    k("v_mov_b32 v1, s3\nds_write_b32 v2, v1\ns_mov_b64 exec, -1")
    k.wait(lgkm=0)
    k.label("L_claimed")
    k("s_barrier\nds_read_b32 v1, v2")
    k("v_readfirstlane_b32 s3, v1")
    k(f"s_and_b32 s{S_RANK}, s3, 31\ns_bfe_u32 s{S_LIST}, s3, 0x40008\ns_lshr_b32 s{S_FOREIGN}, s3, 16")
    roles = opt["roles"]
    far = []
    for lo, hi, lab in ((0, 1, "team"), (1, 4, "proj"), (4, 7, "col"), (7, 8, "ffn")):
        k(f"s_cmp_lt_u32 s{S_LIST}, {hi}\ns_cbranch_scc1 {'L_' + lab if lab in roles else 'L_exit'}")
    k.label("L_exit")
    if opt.get("total"):
        k.fresh()
        k("s_memrealtime s[98:99]\ns_memtime s[90:91]\ns_mov_b64 exec, 1")
        k(f"s_lshl_b32 s3, s{S_LIST}, 5\ns_add_u32 s3, s3, s{S_RANK}\ns_lshl_b32 s3, s3, 2\ns_add_u32 s3, s3, s{S_WAVE}\ns_lshl_b32 s3, s3, 5")
        k(f"s_add_u32 s3, s3, {WS_STAMP + 0x100000:#x}\nv_mov_b32 v2, 0")
        k.wait(lgkm=0)
        k("v_mov_b32 v4, s100\nv_mov_b32 v5, s98\nv_mov_b32 v6, s96\nv_mov_b32 v7, s94")
        k(f"buffer_store_dwordx4 v[4:7], v2, {WS}, s3 offen")
        k(f"s_sub_u32 s90, s90, s92\nv_mov_b32 v8, s90\nv_mov_b32 v9, s{S_BUDGET}\nv_mov_b32 v10, s52")
        k(f"buffer_store_dwordx3 v[8:10], v2, {WS}, s3 offen offset:16")
        if opt.get("dbgtime"):
            k(f"v_not_b32 v4, v4\nbuffer_atomic_umax v4, v2, {DBG}, 0 offen offset:12")
            k(f"buffer_atomic_umax v5, v2, {DBG}, 0 offen offset:16")
            k(f"s_cmp_lg_u32 s{S_LIST}, 0\ns_cbranch_scc1 L_end")
            k(f"buffer_atomic_umax v5, v2, {DBG}, 0 offen offset:20")
            k(f"buffer_atomic_umax v6, v2, {DBG}, 0 offen offset:24")
            k(f"buffer_atomic_umax v7, v2, {DBG}, 0 offen offset:28")
            k(f"buffer_atomic_umax v8, v2, {DBG}, 0 offen offset:36")
    k.label("L_end")
    k("s_endpgm")
    k.fresh()
    k.label("L_timeout")
    k(f"s_mov_b64 exec, 1\nv_mov_b32 v1, s3\nv_mov_b32 v2, 0")
    k(f"buffer_store_dword v1, v2, {DBG}, 0 offen offset:{DBG_ERR}")
    k("s_endpgm")


def generate(**opt):
    opt.setdefault("roles", ("team", "proj", "col", "ffn"))
    opt["c_bits"] = f2u(128 ** -0.5 * math.log2(math.e))
    k = Emit()
    entry(k, opt)
    if "team" in opt["roles"]:
        T.team(k, opt)
    if set(opt["roles"]) - {"team"}:
        import workers as W
        W.workers(k, opt)
    out = HEADER + "; @launch grid=(256,1,1) block=(256,1,1) lds=163840\n"
    out += f'.amdgcn_target "amdgcn-amd-amdhsa--gfx950"\n.text\n.globl {NAME}\n.p2align 8\n.type {NAME},@function\n{NAME}:\n'
    out += k.text()
    out += f""".section .rodata,"a"
.p2align 6
.amdhsa_kernel {NAME}
  .amdhsa_next_free_vgpr 512
  .amdhsa_next_free_sgpr 102
  .amdhsa_accum_offset 256
  .amdhsa_group_segment_fixed_size 0
  .amdhsa_kernarg_size 112
  .amdhsa_user_sgpr_count 2
  .amdhsa_user_sgpr_kernarg_segment_ptr 1
  .amdhsa_system_sgpr_workgroup_id_x 1
.end_amdhsa_kernel
"""
    return out


if __name__ == "__main__":
    path = sys.argv[1] if len(sys.argv) > 1 else "recurrent_scan__memory_aug_recurrent_mem_tr__geglu_ffn__prompt.s"
    open(path, "w").write(generate())
```
